```python
import torch

def _softmax(x, axis=-1):
    return torch.softmax(x, dim=axis)
def _gelu(x):
    return torch.nn.functional.gelu(x, approximate="tanh")
def _silu(x):
    return torch.nn.functional.silu(x)
def _sigmoid(x):
    return torch.sigmoid(x)
def _layernorm(x, axis=-1, eps=1e-5):
    m = x.mean(dim=axis, keepdim=True)
    v = x.var(dim=axis, keepdim=True, unbiased=False)
    return (x - m) / torch.sqrt(v + eps)
def _scatter_add(tgt, idx, src, axis=0):
    return tgt.clone().index_add_(axis, idx, src)
def _segment_sum(src, seg, n):
    out = torch.zeros((n,) + src.shape[1:], dtype=src.dtype)
    return out.index_add_(0, seg, src)
def _pad(x, pw):
    flat = tuple(v for pair in reversed(pw) for v in pair)
    return torch.nn.functional.pad(x, flat)

kernel_name = 'recurrent_scan__ssm_conv_h3__glu_gated_geglu__prompt'

def setup_inputs():

    _w = (lambda a: (lambda t: t.to(torch.bfloat16) if t.is_floating_point() else t)(torch.as_tensor(a)))
    def _A_setup():
        B, S, D = 1, 2048, 512
        ks = 4
        return {
            "q": _w((lambda *s: torch.randn(*s, dtype=torch.bfloat16) * 0.05)(B, S, D)),
            "k": _w((lambda *s: torch.randn(*s, dtype=torch.bfloat16) * 0.8)(B, S, D)),
            "v": _w((lambda *s: torch.randn(*s, dtype=torch.bfloat16) * 0.8)(B, S, D)),
            "shift_k": _w((lambda *s: torch.randn(*s, dtype=torch.bfloat16) * 0.8)(D, ks) * 0.5),
            "ssm_k": _w((lambda *s: torch.randn(*s, dtype=torch.bfloat16) * 1.6)(D, S) * (1.0 / S ** 0.5)),
            "ssm_D": _w((lambda *s: torch.randn(*s, dtype=torch.bfloat16) * 0.8)(D)),
        }
    _A_in = _A_setup()

    def _B_setup():
        B, S, Dm, Df = 1, 2048, 512, 1376
        return {
            "x": _w((lambda *s: torch.randn(*s, dtype=torch.bfloat16) * 0.05)(B, S, Dm)),
            "w_gate": _w((lambda *s: torch.randn(*s, dtype=torch.bfloat16) * 0.2)(Dm, Df) * (Dm ** -0.5)),
            "w_up": _w((lambda *s: torch.randn(*s, dtype=torch.bfloat16) * 0.2)(Dm, Df) * (Dm ** -0.5)),
            "w_down": _w((lambda *s: torch.randn(*s, dtype=torch.bfloat16) * 0.2)(Df, Dm) * (Df ** -0.5)),
        }
    _B_in = _B_setup()

    return {
        "A_q": _A_in["q"],
        "A_k": _A_in["k"],
        "A_v": _A_in["v"],
        "A_shift_k": _A_in["shift_k"],
        "A_ssm_k": _A_in["ssm_k"],
        "A_ssm_D": _A_in["ssm_D"],
        "B_x": _B_in["x"],
        "B_w_gate": _B_in["w_gate"],
        "B_w_up": _B_in["w_up"],
        "B_w_down": _B_in["w_down"],
    }

def reference(A_q, A_k, A_v, A_shift_k, A_ssm_k, A_ssm_D, B_x, B_w_gate, B_w_up, B_w_down):
    def _A_ref(q, k, v, shift_k, ssm_k, ssm_D):
        B, S, D = q.shape
        ks = shift_k.shape[-1]
        k_pad = _pad(k, ((0, 0), (ks - 1, 0), (0, 0)))
        k_shift = torch.zeros_like(k)
        for t in range(ks):
            k_shift = k_shift + k_pad[:, t:t + S, :] * shift_k[:, ks - 1 - t][None, None, :]
        kv = k_shift * v
        L = 2 * S
        kv_pad = _pad(kv, ((0, 0), (0, S), (0, 0)))
        kf_pad = _pad(ssm_k, ((0, 0), (0, S)))
        kv_f = (lambda x, axes=(-2,-1): torch.fft.rfft2(x.float(), dim=axes))(kv_pad[:, None, :, :], axes=(1, 2))
        kf_f = (lambda x, axes=(-2,-1): torch.fft.rfft2(x.float(), dim=axes))(kf_pad[:, None, :], axes=(1, 2))
        kf_f = (lambda x, *d: x.permute(*d))(kf_f, 1, 2, 0)
        y_f = kv_f * kf_f[None, :, :, :]
        y = (lambda x, s, axes=(-2,-1): torch.fft.irfft2(x, s=s, dim=axes).to(torch.bfloat16))(y_f, (1, L), axes=(1, 2))[:, 0, :S, :]
        y = y + kv * ssm_D[None, None, :]
        return q * y

    def _B_ref(x, w_gate, w_up, w_down):
        g = torch.einsum("bsd,df->bsf", x, w_gate)
        u = torch.einsum("bsd,df->bsf", x, w_up)
        h = _gelu(g) * u
        return torch.einsum("bsf,fd->bsd", h, w_down)

    x = A_q
    xn = _layernorm(x, axis=-1)
    s = _A_ref(xn, A_k, A_v, A_shift_k, A_ssm_k, A_ssm_D)
    g = _silu(_B_ref(xn, B_w_gate, B_w_up, B_w_down))
    return x + s * g
```

```python
class A:
    def __init__(self):
        self.l = []
        self.uid = 0
    def __call__(self, s):
        for line in s.split("\n"):
            line = line.strip()
            if line:
                self.l.append("    " + line if not line.endswith(":") else line)
    def c(self, s):
        self.l.append("    ; " + s)
    def label(self, name):
        self.l.append(name + ":")
    def newlabel(self, p="L"):
        self.uid += 1
        return f"{p}_{self.uid}"
    def nop(self, n):
        while n > 0:
            k = min(n, 16)
            self.l.append(f"    s_nop {k-1}")
            n -= k
    def text(self):
        return "\n".join(self.l) + "\n"

def vr(b, n=1):
    return f"v{b}" if n == 1 else f"v[{b}:{b+n-1}]"
def ar(b, n=1):
    return f"a{b}" if n == 1 else f"a[{b}:{b+n-1}]"
def sr(b, n=1):
    return f"s{b}" if n == 1 else f"s[{b}:{b+n-1}]"

def srd(a, dst, lo, hi, nbytes):
    a(f"s_mov_b32 s{dst}, s{lo}")
    a(f"s_and_b32 s{dst+1}, s{hi}, 0xffff")
    a(f"s_mov_b32 s{dst+2}, {nbytes}")
    a(f"s_mov_b32 s{dst+3}, 0x00020000")

def kernel_header(name):
    return f""".globl {name}
.p2align 8
.type {name},@function
{name}:
"""

def kernel_desc(name, vgpr, sgpr=96, accum=None):
    if accum is None:
        accum = (vgpr + 3) // 4 * 4
    return f""".amdhsa_kernel {name}
  .amdhsa_next_free_vgpr {vgpr}
  .amdhsa_next_free_sgpr {sgpr}
  .amdhsa_accum_offset {accum}
  .amdhsa_group_segment_fixed_size 0
  .amdhsa_kernarg_size 104
  .amdhsa_user_sgpr_count 2
  .amdhsa_user_sgpr_kernarg_segment_ptr 1
  .amdhsa_system_sgpr_workgroup_id_x 1
.end_amdhsa_kernel
"""
```

```python
from asmlib import *

WS_KVT   = 0x000000
WS_STATS = 0x200000
WS_HF    = 0x400000
WS_YT    = 0xA00000
WS_SIZE  = 0x10000000
S, D, F = 2048, 512, 1376

KA_Q, KA_K, KA_V, KA_SK, KA_H, KA_DD, KA_BX, KA_WG, KA_WU, KA_WD, KA_OUT, KA_DBG, KA_WS = [8*i for i in range(13)]

def wave_sum16(a, v, tmp=None):
    a(f"v_add_f32_dpp v{v}, v{v}, v{v} quad_perm:[1,0,3,2] row_mask:0xf bank_mask:0xf")
    a.nop(2)
    a(f"v_add_f32_dpp v{v}, v{v}, v{v} quad_perm:[2,3,0,1] row_mask:0xf bank_mask:0xf")
    a.nop(2)
    a(f"v_add_f32_dpp v{v}, v{v}, v{v} row_half_mirror row_mask:0xf bank_mask:0xf")
    a.nop(2)
    a(f"v_add_f32_dpp v{v}, v{v}, v{v} row_mirror row_mask:0xf bank_mask:0xf")

def wave_sum64(a, v, s0):
    a.nop(2)
    wave_sum16(a, v)
    a.nop(1)
    a(f"v_readlane_b32 s{s0}, v{v}, 0")
    a(f"v_readlane_b32 s{s0+1}, v{v}, 16")
    a(f"v_readlane_b32 s{s0+2}, v{v}, 32")
    a(f"v_readlane_b32 s{s0+3}, v{v}, 48")
    a.nop(2)
    a(f"v_mov_b32 v{v}, s{s0}")
    a(f"v_add_f32 v{v}, s{s0+1}, v{v}")
    a(f"v_add_f32 v{v}, s{s0+2}, v{v}")
    a(f"v_add_f32 v{v}, s{s0+3}, v{v}")

def stage_A(a, done):
    a("s_load_dwordx4 s[4:7], s[0:1], 0")
    a("s_load_dwordx4 s[8:11], s[0:1], 16")
    a(f"s_load_dwordx2 s[12:13], s[0:1], {KA_WS}")
    a("s_waitcnt lgkmcnt(0)")
    srd(a, 16, 4, 5, S*D*2)
    srd(a, 20, 6, 7, S*D*2)
    srd(a, 24, 8, 9, S*D*2)
    srd(a, 28, 10, 11, D*4*2)
    srd(a, 32, 12, 13, WS_SIZE)
    a("s_lshr_b32 s36, s2, 3")
    a("s_and_b32 s37, s2, 7")
    a("v_and_b32 v1, 7, v0")
    a("v_lshrrev_b32 v2, 3, v0")
    a("s_lshl_b32 s38, s36, 16")
    a("s_lshl_b32 s39, s37, 7")
    a("s_add_u32 s38, s38, s39")
    a("v_lshlrev_b32 v3, 10, v2")
    a("v_lshl_add_u32 v3, v1, 4, v3")
    a("v_add_u32 v3, s38, v3")
    a("v_subrev_u32 v4, 3072, v3")
    a("v_subrev_u32 v5, 2048, v3")
    a("v_subrev_u32 v6, 1024, v3")
    a("buffer_load_dwordx4 v[8:11], v4, s[20:23], 0 offen")
    a("buffer_load_dwordx4 v[12:15], v5, s[20:23], 0 offen")
    a("buffer_load_dwordx4 v[16:19], v6, s[20:23], 0 offen")
    a("buffer_load_dwordx4 v[20:23], v3, s[20:23], 0 offen")
    a("buffer_load_dwordx4 v[24:27], v3, s[24:27], 0 offen")
    a("s_lshl_b32 s39, s37, 9")
    a("v_lshlrev_b32 v7, 6, v1")
    a("v_add_u32 v7, s39, v7")
    for i in range(4):
        a(f"buffer_load_dwordx4 v[{28+4*i}:{31+4*i}], v7, s[28:31], 0 offen offset:{16*i}")
    a("v_lshrrev_b32 v44, 6, v0")
    a("v_and_b32 v45, 63, v0")
    a("s_lshl_b32 s39, s2, 13")
    a("v_lshlrev_b32 v46, 10, v44")
    a("v_lshl_add_u32 v46, v45, 4, v46")
    a("v_add_u32 v46, s39, v46")
    a("buffer_load_dwordx4 v[48:51], v46, s[16:19], 0 offen")
    a("s_mov_b32 s40, 0x05040100")
    a("s_mov_b32 s41, 0x07060302")
    a("v_sub_u32 v52, 7, v44")
    a("v_xor_b32 v52, v52, v1")
    a("v_lshlrev_b32 v52, 4, v52")
    a("v_lshrrev_b32 v53, 3, v45")
    a("v_sub_u32 v53, 7, v53")
    a("v_lshl_add_u32 v52, v53, 1, v52")
    a("v_lshl_add_u32 v52, v1, 10, v52")
    a("s_waitcnt vmcnt(1)")
    res = 56
    for m in range(4):
        for half in range(2):
            e = 2*m + half
            sel = "s40" if half == 0 else "s41"
            a(f"v_perm_b32 v{64+2*e}, v{16+m}, v{20+m}, {sel}")
            a(f"v_perm_b32 v{65+2*e}, v{8+m}, v{12+m}, {sel}")
    for e in range(8):
        a(f"v_dot2_f32_bf16 v{res+e}, v{64+2*e}, v{28+2*e}, 0")
    for e in range(8):
        a(f"v_dot2_f32_bf16 v{res+e}, v{65+2*e}, v{29+2*e}, v{res+e}")
    for m in range(4):
        a(f"v_lshlrev_b32 v{64+2*m}, 16, v{24+m}")
        a(f"v_and_b32 v{65+2*m}, 0xffff0000, v{24+m}")
    for e in range(8):
        a(f"v_mul_f32 v{res+e}, v{res+e}, v{64+e}")
    for m in range(4):
        a(f"v_cvt_pk_bf16_f32 v{64+m}, v{res+2*m}, v{res+2*m+1}")
    for m in range(4):
        a(f"ds_write_b16 v52, v{64+m} offset:{(2*m)*128}")
        a(f"ds_write_b16_d16_hi v52, v{64+m} offset:{(2*m+1)*128}")
    a("s_waitcnt vmcnt(0)")
    a("v_mov_b32 v54, 0x3f803f80")
    a("v_mov_b32 v55, 0")
    for m in range(4):
        a(f"v_dot2_f32_bf16 v55, v{48+m}, v54, v55")
    a.nop(3)
    wave_sum64(a, 55, 44)
    a("v_mul_f32 v55, 0x3b000000, v55")
    for m in range(4):
        a(f"v_lshlrev_b32 v{72+2*m}, 16, v{48+m}")
        a(f"v_and_b32 v{73+2*m}, 0xffff0000, v{48+m}")
    for e in range(8):
        a(f"v_sub_f32 v{72+e}, v{72+e}, v55")
    a("v_mul_f32 v80, v72, v72")
    for e in range(1, 8):
        a(f"v_fmac_f32 v80, v{72+e}, v{72+e}")
    wave_sum64(a, 80, 44)
    a("v_mov_b32 v81, 0x3727c5ac")
    a("v_fmac_f32 v81, 0x3b000000, v80")
    a("v_rsq_f32 v81, v81")
    a.nop(1)
    a("v_mov_b32 v80, v55")
    a("s_lshl_b32 s39, s2, 6")
    a("v_lshl_add_u32 v82, v44, 3, s39")
    a(f"v_add_u32 v82, {WS_STATS}, v82")
    a("v_cmp_eq_u32 vcc, 0, v45")
    a("s_and_saveexec_b64 s[42:43], vcc")
    a("buffer_store_dwordx2 v[80:81], v82, s[32:35], 0 offen")
    a("s_mov_b64 exec, s[42:43]")
    a("s_waitcnt lgkmcnt(0)")
    a("s_barrier")
    a("v_lshrrev_b32 v53, 3, v2")
    a("v_xor_b32 v53, v53, v1")
    a("v_lshlrev_b32 v53, 4, v53")
    a("v_lshl_add_u32 v53, v2, 7, v53")
    a("ds_read_b128 v[64:67], v53")
    a("s_lshl_b32 s39, s37, 18")
    a("s_lshl_b32 s38, s36, 7")
    a("s_sub_u32 s39, s39, s38")
    a(f"s_add_u32 s39, s39, {WS_KVT + 1984*2}")
    a("v_lshlrev_b32 v54, 12, v2")
    a("v_lshl_add_u32 v54, v1, 4, v54")
    a("v_add_u32 v54, s39, v54")
    a("s_waitcnt lgkmcnt(0)")
    a("buffer_store_dwordx4 v[64:67], v54, s[32:35], 0 offen")

def gen_KA(name="ka_kernel"):
    a = A()
    a("s_cmp_ge_u32 s2, 256")
    a("s_cbranch_scc1 Lka_done")
    stage_A(a, "Lka_done")
    a.label("Lka_done")
    a("s_endpgm")
    return kernel_header(name) + a.text(), kernel_desc(name, 96, 64)

F1_WSLOT = 24576
F1_QBASE = 73728
F1_QSLOT = 16384
F1_CS    = 122880
F1_LDS   = 123648
F1_HT    = 0

def check_div12():
    for p in range(768):
        assert (p * 43691) >> 19 == p // 12
check_div12()

def stage_F1(a, done):
    a("s_and_b32 s3, s2, 7")
    a("s_lshr_b32 s4, s2, 3")
    a("s_and_b32 s5, s3, 1")
    a("s_lshl_b32 s5, s5, 3")
    a("s_and_b32 s6, s4, 7")
    a("s_add_u32 s40, s5, s6")
    a("s_lshr_b32 s5, s3, 1")
    a("s_lshl_b32 s5, s5, 2")
    a("s_lshr_b32 s6, s4, 3")
    a("s_add_u32 s41, s5, s6")
    a("s_cmp_ge_u32 s41, 15")
    a(f"s_cbranch_scc1 {done}")
    a("s_load_dwordx2 s[4:5], s[0:1], 0")
    a(f"s_load_dwordx4 s[8:11], s[0:1], {KA_WG}")
    a(f"s_load_dwordx2 s[12:13], s[0:1], {KA_WS}")
    a("v_lshrrev_b32 v1, 6, v0")
    a("v_and_b32 v2, 63, v0")
    a("v_readfirstlane_b32 s30, v1")
    a("s_waitcnt lgkmcnt(0)")
    a("s_and_b32 s31, s30, 3")
    a("s_lshr_b32 s32, s30, 2")
    srd(a, 16, 4, 5, S*D*2)
    a("s_cmp_eq_u32 s32, 0")
    a("s_cselect_b32 s6, s8, s10")
    a("s_cselect_b32 s7, s9, s11")
    srd(a, 20, 6, 7, D*F*2)
    srd(a, 24, 12, 13, WS_SIZE)
    a("v_mov_b32 v3, 0")
    a("v_lshlrev_b32 v4, 2, v0")
    a(f"v_add_u32 v4, {F1_CS}, v4")
    a("v_cmp_gt_u32 vcc, 192, v0")
    a("s_and_saveexec_b64 s[34:35], vcc")
    a("ds_write_b32 v4, v3")
    a("s_mov_b64 exec, s[34:35]")
    a("v_lshrrev_b32 v3, 3, v2")
    a("v_lshrrev_b32 v4, 4, v2")
    a("v_and_b32 v5, 7, v2")
    a("s_lshl_b32 s33, s40, 17")
    a("s_lshl_b32 s34, s30, 14")
    a("s_add_u32 s33, s33, s34")
    VQ = [8, 9]
    for e in range(2):
        a(f"v_add_u32 v6, {4*e}, v4")
        a("v_and_b32 v6, 7, v6")
        a("v_xor_b32 v6, v6, v5")
        a("v_lshlrev_b32 v6, 4, v6")
        a(f"v_lshl_add_u32 v6, v3, 10, v6")
        a(f"v_add_u32 v{VQ[e]}, s33, v6")
        if e == 1:
            a(f"v_add_u32 v{VQ[e]}, 8192, v{VQ[e]}")
    VW = [10, 11, 12]
    a("s_mul_i32 s33, s31, 192")
    a("s_mul_i32 s34, s41, 192")
    a("s_mov_b32 s35, 43691")
    a("s_movk_i32 s36, 2752")
    for e in range(3):
        a(f"v_add_u32 v6, s33, v2")
        if e:
            a(f"v_add_u32 v6, {64*e}, v6")
        a("v_mul_u32_u24 v7, s35, v6")
        a("v_lshrrev_b32 v7, 19, v7")
        a("v_mul_u32_u24 v13, 12, v7")
        a("v_sub_u32 v6, v6, v13")
        a("v_lshrrev_b32 v13, 2, v7")
        a("v_and_b32 v13, 2, v13")
        a("v_xor_b32 v6, v6, v13")
        a("v_lshlrev_b32 v6, 4, v6")
        a("v_mul_u32_u24 v7, s36, v7")
        a("v_add_u32 v6, v6, v7")
        a(f"v_add_u32 v{VW[e]}, s34, v6")
    a("s_lshl_b32 s42, s30, 11")
    a(f"s_add_u32 s42, s42, {F1_QBASE}")
    a("s_mul_i32 s43, s32, 12288")
    a("s_mul_i32 s44, s31, 3072")
    a("s_add_u32 s43, s43, s44")
    def dma(J):
        slot = J % 3
        a(f"s_mov_b32 s45, {J*128}")
        a(f"s_mov_b32 s46, {J*64*2752}")
        for e in range(2):
            a(f"s_add_u32 m0, s42, {slot*F1_QSLOT + e*1024}")
            a.nop(1)
            a(f"buffer_load_dwordx4 v{VQ[e]}, s[16:19], s45 offen lds")
        for e in range(3):
            a(f"s_add_u32 m0, s43, {slot*F1_WSLOT + e*1024}")
            a.nop(1)
            a(f"buffer_load_dwordx4 v{VW[e]}, s[20:23], s46 offen lds")
    a("v_and_b32 v14, 15, v2")
    a("v_lshrrev_b32 v15, 4, v2")
    a("s_lshl_b32 s33, s40, 10")
    a("s_lshl_b32 s34, s31, 8")
    a("s_add_u32 s33, s33, s34")
    a(f"s_add_u32 s33, s33, {WS_STATS}")
    a("v_lshl_add_u32 v16, v14, 3, s33")
    a("buffer_load_dwordx2 v[18:19], v16, s[24:27], 0 offen")
    a("buffer_load_dwordx2 v[20:21], v16, s[24:27], 0 offen offset:128")
    dma(0); dma(1); dma(2)
    VRQ = [22, 23]
    a("v_lshrrev_b32 v6, 1, v14")
    a("s_lshl_b32 s33, s31, 12")
    a(f"s_add_u32 s33, s33, {F1_QBASE}")
    for ks in range(2):
        a(f"v_add_u32 v7, {4*ks}, v15")
        a("v_xor_b32 v7, v7, v6")
        a("v_lshlrev_b32 v7, 4, v7")
        a("v_lshl_add_u32 v7, v14, 7, v7")
        a(f"v_add_u32 v{VRQ[ks]}, s33, v7")
    VRW = [[24, 25, 26], [27, 28, 29]]
    a("v_lshrrev_b32 v6, 2, v2")
    a("v_and_b32 v6, 3, v6")
    a("v_lshl_add_u32 v6, v15, 3, v6")
    a("v_mul_u32_u24 v6, 192, v6")
    a("v_and_b32 v7, 3, v2")
    a("v_and_b32 v13, 1, v7")
    a("v_lshl_add_u32 v6, v13, 3, v6")
    a("v_lshrrev_b32 v7, 1, v7")
    a("v_lshl_add_u32 v6, v7, 4, v6")
    a("v_and_b32 v7, 1, v15")
    a("v_lshlrev_b32 v7, 1, v7")
    a("s_mul_i32 s33, s32, 6")
    for t in range(3):
        a(f"s_add_u32 s34, s33, {2*t}")
        a("v_xor_b32 v13, s34, v7")
        a(f"v_lshl_add_u32 v{VRW[0][t]}, v13, 4, v6")
        a(f"v_add_u32 v{VRW[1][t]}, 12288, v{VRW[0][t]}")
    ACC = 32
    def acc(st, t, gu): return ACC + ((st*3 + t)*2 + gu)*4
    FS = [80, 112]
    def fq(s, st): return FS[s] + 4*st
    def fw(s, gu, t): return FS[s] + 8 + (gu*3 + t)*4
    CSR = 144
    VONES = 150
    a(f"v_mov_b32 v{VONES}, 0x3f803f80")
    for i in range(6):
        a(f"v_mov_b32 v{CSR+i}, 0")
    def reads(J, ks, s):
        slot = J % 3
        r = []
        for st in range(2):
            r.append(f"ds_read_b128 {vr(fq(s, st), 4)}, v{VRQ[ks]} offset:{slot*F1_QSLOT + st*2048}")
        for t in range(3):
            for gu in range(2):
                for hf in range(2):
                    r.append(f"ds_read_b64_tr_b16 {vr(fw(s, gu, t) + 2*hf, 2)}, v{VRW[gu][t]} offset:{slot*F1_WSLOT + (32*ks + 4*hf)*192}")
        return r
    def mfmas(s, first):
        m = []
        for t in range(3):
            for gu in range(2):
                for st in range(2):
                    c = "0" if first else vr(acc(st, t, gu), 4)
                    m.append(f"v_mfma_f32_16x16x32_bf16 {vr(acc(st,t,gu),4)}, {vr(fw(s,gu,t),4)}, {vr(fq(s,st),4)}, {c}")
        return m
    def part(s_cur, first, nxt, kstep):
        a("s_waitcnt lgkmcnt(0)")
        m = mfmas(s_cur, first)
        ri = 0
        for i, x in enumerate(m):
            a(x)
            want = ((i + 1) * len(nxt) + len(m) - 1) // len(m) if nxt else 0
            while ri < min(want, len(nxt)):
                a(nxt[ri]); ri += 1
        lab = a.newlabel("Lcs")
        a(f"s_cmp_lg_u32 s31, {kstep % 4}")
        a(f"s_cbranch_scc1 {lab}")
        for r4 in range(4):
            for gu in range(2):
                for t in range(3):
                    a(f"v_dot2c_f32_bf16 v{CSR + gu*3 + t}, v{fw(s_cur, gu, t) + r4}, v{VONES}")
        a.label(lab)
    a("s_waitcnt vmcnt(10)")
    a("s_barrier")
    for x in reads(0, 0, 0):
        a(x)
    NJ = 8
    for J in range(NJ):
        part(0, J == 0, reads(J, 1, 1), 2*J)
        a("s_waitcnt lgkmcnt(0)")
        if J + 1 < NJ:
            n_after = 5 if J + 2 < NJ else 0
            a(f"s_waitcnt vmcnt({n_after})")
            a("s_barrier")
            if J + 3 < NJ:
                dma(J + 3)
            part(1, False, reads(J + 1, 0, 0), 2*J + 1)
        else:
            part(1, False, [], 2*J + 1)
    a.nop(4)
    a("s_mul_i32 s33, s32, 192")
    a(f"s_add_u32 s33, s33, {F1_CS}")
    a("v_lshl_add_u32 v6, v14, 2, s33")
    for gu in range(2):
        for t in range(3):
            a(f"ds_add_f32 v6, v{CSR + gu*3 + t} offset:{gu*384 + t*64}")
    a("s_waitcnt lgkmcnt(0) vmcnt(0)")
    a("s_barrier")
    a("v_lshl_add_u32 v6, v15, 4, s33")
    CSD = 80
    for gu in range(2):
        for t in range(3):
            a(f"ds_read_b128 {vr(CSD + (gu*3+t)*4, 4)}, v6 offset:{gu*384 + t*64}")
    a("s_mov_b32 s36, 0x40135761")
    a("s_mov_b32 s37, 0x3dd2d3e4")
    import struct
    c1 = 2.0 * (2.0 / 3.141592653589793) ** 0.5 * 1.4426950408889634
    c2 = c1 * 0.044715
    a.l[-2] = "    s_mov_b32 s36, 0x%08x" % struct.unpack("<I", struct.pack("<f", c1))[0]
    a.l[-1] = "    s_mov_b32 s37, 0x%08x" % struct.unpack("<I", struct.pack("<f", c2))[0]
    a("s_mul_i32 s33, s31, 6144")
    a("s_mul_i32 s34, s32, 1536")
    a("s_add_u32 s33, s33, s34")
    if F1_HT: a(f"s_add_u32 s33, s33, {F1_HT}")
    a("v_lshrrev_b32 v7, 1, v15")
    a("v_lshlrev_b32 v7, 8, v7")
    a("v_lshl_add_u32 v7, v14, 4, v7")
    a("v_and_b32 v13, 1, v15")
    a("v_lshl_add_u32 v7, v13, 3, v7")
    a("v_add_u32 v7, s33, v7")
    a("s_waitcnt lgkmcnt(0)")
    T = 112
    for st in range(2):
        mean, rstd = 18 + 2*st, 19 + 2*st
        for t in range(3):
            g0, u0 = acc(st, t, 0), acc(st, t, 1)
            cg, cu = CSD + t*4, CSD + (3 + t)*4
            for j in range(4):
                a(f"v_fma_f32 v{g0+j}, -v{mean}, v{cg+j}, v{g0+j}")
                a(f"v_fma_f32 v{u0+j}, -v{mean}, v{cu+j}, v{u0+j}")
            for j in range(4):
                a(f"v_mul_f32 v{g0+j}, v{rstd}, v{g0+j}")
                a(f"v_mul_f32 v{u0+j}, v{rstd}, v{u0+j}")
            for j in range(4):
                a(f"v_mul_f32 v{T+j}, v{g0+j}, v{g0+j}")
            for j in range(4):
                a(f"v_mov_b32 v{T+4+j}, s36")
            for j in range(4):
                a(f"v_fmac_f32 v{T+4+j}, s37, v{T+j}")
            for j in range(4):
                a(f"v_mul_f32 v{T+4+j}, v{T+4+j}, v{g0+j}")
            for j in range(4):
                a(f"v_exp_f32 v{T+j}, -v{T+4+j}")
            for j in range(4):
                a(f"v_mul_f32 v{u0+j}, v{u0+j}, v{g0+j}")
            for j in range(4):
                a(f"v_add_f32 v{T+j}, 1.0, v{T+j}")
            for j in range(4):
                a(f"v_rcp_f32 v{T+j}, v{T+j}")
            a.nop(1)
            for j in range(4):
                a(f"v_mul_f32 v{u0+j}, v{u0+j}, v{T+j}")
            a(f"v_cvt_pk_bf16_f32 v{T+8}, v{u0}, v{u0+1}")
            a(f"v_cvt_pk_bf16_f32 v{T+9}, v{u0+2}, v{u0+3}")
            a(f"ds_write_b64 v7, {vr(T+8, 2)} offset:{st*3072 + t*512}")
    a("s_waitcnt lgkmcnt(0)")
    a("s_barrier")
    a("v_lshlrev_b32 v6, 4, v2")
    a("s_mul_i32 s33, s30, 3072")
    if F1_HT: a(f"s_add_u32 s33, s33, {F1_HT}")
    a("v_add_u32 v7, s33, v6")
    for kf in range(3):
        a(f"ds_read_b128 {vr(T+4*kf, 4)}, v7 offset:{kf*1024}")
    a("s_lshl_b32 s33, s40, 1")
    a("s_add_u32 s33, s33, s32")
    a("s_mul_i32 s33, s33, 43")
    a("s_mul_i32 s34, s41, 3")
    a("s_add_u32 s33, s33, s34")
    a("s_lshl_b32 s33, s33, 2")
    a("s_add_u32 s33, s33, s31")
    a("s_lshl_b32 s33, s33, 10")
    a(f"s_add_u32 s33, s33, {WS_HF}")
    a("v_add_u32 v6, s33, v6")
    a("s_waitcnt lgkmcnt(2)")
    a(f"buffer_store_dwordx4 {vr(T, 4)}, v6, s[24:27], 0 offen")
    a("s_cmp_eq_u32 s41, 14")
    a(f"s_cbranch_scc1 {done}")
    a("v_add_u32 v8, 4096, v6")
    a("v_add_u32 v9, 8192, v6")
    a("s_waitcnt lgkmcnt(0)")
    a(f"buffer_store_dwordx4 {vr(T+4, 4)}, v8, s[24:27], 0 offen")
    a(f"buffer_store_dwordx4 {vr(T+8, 4)}, v9, s[24:27], 0 offen")

def gen_KF1(name="kf1_kernel"):
    a = A()
    a.uid = 1000
    a("s_cmp_ge_u32 s2, 256")
    a("s_cbranch_scc1 Lkf1_done")
    stage_F1(a, "Lkf1_done")
    a.label("Lkf1_done")
    a("s_endpgm")
    return kernel_header(name) + a.text(), kernel_desc(name, 152, 64)

C_HEV, C_HO, C_XO, C_XE = 0, 4224, 8448, 13056
C_CH = 17664
C_RED = 2*C_CH
C_OUT = C_RED
C_LDS = C_RED + 16384 + 8192

def stage_C(a, done):
    a(f"s_load_dwordx4 s[4:7], s[0:1], {KA_H}")
    a(f"s_load_dwordx2 s[12:13], s[0:1], {KA_WS}")
    a("v_lshrrev_b32 v1, 6, v0")
    a("v_and_b32 v2, 63, v0")
    a("v_readfirstlane_b32 s30, v1")
    a("s_waitcnt lgkmcnt(0)")
    a("s_lshl_b32 s33, s2, 2")
    a("s_load_dword s44, s[6:7], s33")
    a("s_lshr_b32 s31, s30, 1")
    a("s_and_b32 s32, s30, 1")
    srd(a, 16, 4, 5, D*S*2)
    srd(a, 24, 12, 13, WS_SIZE)
    a("s_lshl_b32 s33, s2, 1")
    a("s_add_u32 s33, s33, s31")
    a("s_lshl_b32 s34, s33, 12")
    a("s_lshl_b32 s35, s32, 11")
    a("s_add_u32 s35, s35, s34")
    a("v_lshlrev_b32 v3, 4, v2")
    a("v_add_u32 v4, s35, v3")
    a("v_subrev_u32 v5, 4, v4")
    a("buffer_load_dwordx4 v[8:11], v4, s[16:19], 0 offen")
    a("buffer_load_dwordx4 v[12:15], v4, s[16:19], 0 offen offset:1024")
    a("buffer_load_dword v16, v5, s[16:19], 0 offen")
    a("buffer_load_dword v17, v5, s[16:19], 0 offen offset:1024")
    a(f"s_mov_b32 s36, {WS_KVT}")
    a("buffer_load_dwordx4 v[20:23], v4, s[24:27], s36 offen")
    a("buffer_load_dwordx4 v[24:27], v4, s[24:27], s36 offen offset:1024")
    a("buffer_load_dwordx4 v[28:31], v5, s[24:27], s36 offen")
    a("buffer_load_dwordx4 v[32:35], v5, s[24:27], s36 offen offset:1024")
    a(f"s_mul_i32 s37, s31, {C_CH}")
    a("s_lshl_b32 s38, s32, 11")
    a("s_add_u32 s38, s38, s37")
    a("v_add_u32 v6, s38, v3")
    a("v_mov_b32 v36, 0")
    a("v_mov_b32 v37, 0")
    a("v_mov_b32 v38, 0")
    a("v_mov_b32 v39, 0")
    a("v_add_u32 v7, s37, v3")
    lz = a.newlabel("Lz"); lz2 = a.newlabel("Lz")
    a("s_cmp_eq_u32 s32, 0")
    a(f"s_cbranch_scc0 {lz}")
    a("v_cmp_gt_u32 vcc, 4, v2")
    a("s_and_saveexec_b64 s[40:41], vcc")
    a(f"ds_write_b128 v7, v[36:39] offset:{C_HEV}")
    a(f"ds_write_b128 v7, v[36:39] offset:{C_HO}")
    a("s_mov_b64 exec, s[40:41]")
    a("v_cmp_eq_u32 vcc, 0, v2")
    a("s_waitcnt vmcnt(5)")
    a("v_cndmask_b32 v16, v16, v36, vcc")
    a(f"s_branch {lz2}")
    a.label(lz)
    a("v_cmp_gt_u32 vcc, 32, v2")
    a("s_and_saveexec_b64 s[40:41], vcc")
    a(f"ds_write_b128 v7, v[36:39] offset:{C_XO + 4096}")
    a(f"ds_write_b128 v7, v[36:39] offset:{C_XE + 4096}")
    a("s_mov_b64 exec, s[40:41]")
    a.label(lz2)
    a("s_waitcnt vmcnt(4)")
    for e in range(2):
        r = 8 + 4*e; p = 16 + e
        a(f"ds_write_b128 v6, {vr(r,4)} offset:{C_HO + 64 + e*1024}")
        a(f"v_alignbit_b32 v40, v{r}, v{p}, 16")
        a(f"v_alignbit_b32 v41, v{r+1}, v{r}, 16")
        a(f"v_alignbit_b32 v42, v{r+2}, v{r+1}, 16")
        a(f"v_alignbit_b32 v43, v{r+3}, v{r+2}, 16")
        a(f"ds_write_b128 v6, v[40:43] offset:{C_HEV + 64 + e*1024}")
        a.nop(2)
    a("s_waitcnt vmcnt(0)")
    for e in range(2):
        a(f"ds_write_b128 v6, {vr(20+4*e,4)} offset:{C_XO + e*1024}")
        a(f"ds_write_b128 v6, {vr(28+4*e,4)} offset:{C_XE + e*1024}")
    lz3 = a.newlabel("Lz")
    a("s_cmp_eq_u32 s32, 1")
    a(f"s_cbranch_scc0 {lz3}")
    a("v_cmp_eq_u32 vcc, 63, v2")
    a("s_and_saveexec_b64 s[40:41], vcc")
    a("v_mov_b32 v44, s37")
    a(f"ds_write_b32 v44, v27 offset:{C_XE + 4096}")
    a("s_mov_b64 exec, s[40:41]")
    a.label(lz3)
    a("v_and_b32 v14, 15, v2")
    a("v_lshrrev_b32 v15, 4, v2")
    a("v_lshrrev_b32 v45, 1, v14")
    a("v_lshlrev_b32 v46, 3, v45")
    a("v_lshl_add_u32 v46, v15, 4, v46")
    a("v_and_b32 v47, 1, v14")
    a(f"v_mul_u32_u24 v48, {C_HO - C_HEV}, v47")
    a("v_add_u32 v46, v46, v48")
    a("s_lshl_b32 s38, s32, 8")
    a("s_add_u32 s38, s38, s37")
    a(f"s_add_u32 s39, s38, {C_HEV + 8}")
    a("v_add_u32 v46, s39, v46")
    a("v_lshlrev_b32 v49, 4, v15")
    a("v_lshlrev_b32 v50, 6, v45")
    a("v_sub_u32 v49, v49, v50")
    a(f"v_mul_u32_u24 v48, {(C_XE + 456) - (C_XO + 448)}, v47")
    a("v_sub_u32 v49, v49, v48")
    a(f"s_add_u32 s39, s38, {C_XE + 456}")
    a("v_add_u32 v49, s39, v49")
    a("s_waitcnt lgkmcnt(0)")
    a("s_barrier")
    VA, VB = 46, 49
    ACC = 52
    FS = [84, 148]
    def fa(s, i): return FS[s] + 4*i
    def fb(s, i): return FS[s] + 32 + 4*i
    def reads(c, s):
        r = []
        for m in range(8):
            for hf in range(2):
                r.append(f"ds_read_b64 {vr(fa(s,m)+2*hf,2)}, v{VA} offset:{m*512 + c*64 + hf*8}")
            for hf in range(2):
                r.append(f"ds_read_b64 {vr(fb(s,m)+2*hf,2)}, v{VB} offset:{(7-m)*512 + c*64 + hf*8}")
        return r
    pairs = []
    for m in range(8):
        ps = [(x, m) for x in range(m)] + [(m, x) for x in range(m)] + [(m, m)]
        pairs += [(m, p) for p in ps if p[0] + p[1] <= 7]
    assert len(pairs) == 36
    touched = set()
    for x in reads(0, 0): a(x)
    for c in range(4):
        s = c & 1
        nxt = reads(c + 1, s ^ 1) if c < 3 else []
        a("s_waitcnt lgkmcnt(0)")
        ri = 0
        for i, (m, (a1, u)) in enumerate(pairs):
            T = a1 + u
            cc = vr(ACC + 4*T, 4) if T in touched else "0"
            touched.add(T)
            a(f"v_mfma_f32_16x16x32_bf16 {vr(ACC+4*T,4)}, {vr(fa(s,a1),4)}, {vr(fb(s,u),4)}, {cc}")
            if ri < len(nxt):
                a(nxt[ri]); ri += 1
        while ri < len(nxt):
            a(nxt[ri]); ri += 1
    a.nop(8)
    a("s_lshl_b32 s33, s30, 12")
    a(f"s_add_u32 s33, s33, {C_RED}")
    a("v_add_u32 v6, s33, v3")
    a("s_xor_b32 s34, s30, 1")
    a("s_lshl_b32 s34, s34, 12")
    a(f"s_add_u32 s34, s34, {C_RED}")
    a("v_add_u32 v7, s34, v3")
    lk0 = a.newlabel("Lr"); lk1 = a.newlabel("Lr")
    a("s_cmp_eq_u32 s32, 0")
    a(f"s_cbranch_scc0 {lk0}")
    for t in range(4):
        a(f"ds_write_b128 v6, {vr(ACC+16+4*t,4)} offset:{t*1024}")
    a(f"s_branch {lk1}")
    a.label(lk0)
    for t in range(4):
        a(f"ds_write_b128 v6, {vr(ACC+4*t,4)} offset:{t*1024}")
    a.nop(2)
    for i in range(16):
        a(f"v_mov_b32 v{ACC+i}, v{ACC+16+i}")
    a.label(lk1)
    a("s_waitcnt lgkmcnt(0)")
    a("s_barrier")
    R = 84
    for t in range(4):
        a(f"ds_read_b128 {vr(R+4*t,4)}, v7 offset:{t*1024}")
    a("v_lshlrev_b32 v8, 4, v15")
    a("v_lshl_add_u32 v8, v47, 2, v8")
    a("v_lshl_add_u32 v8, v45, 6, v8")
    a("s_lshl_b32 s33, s32, 11")
    a("s_sub_u32 s33, s37, s33")
    a(f"s_add_u32 s33, s33, {C_XO + 2042*2 - 3*512}")
    a("v_sub_u32 v9, s33, v8")
    K = 100
    for t in range(4):
        a(f"ds_read_b32 v{K+2*t}, v9 offset:{(3-t)*512}")
        a(f"ds_read_b32 v{K+2*t+1}, v9 offset:{(3-t)*512+8}")
    a("s_lshl_b32 s34, s44, 16")
    a("s_and_b32 s35, s44, 0xffff0000")
    a("s_cmp_eq_u32 s31, 0")
    a("s_cselect_b32 s34, s34, s35")
    a("s_lshl_b32 s33, s30, 11")
    a(f"s_add_u32 s33, s33, {C_RED + 16384}")
    a("v_add_u32 v10, s33, v8")
    a("s_waitcnt lgkmcnt(0)")
    for t in range(4):
        for j in range(4):
            a(f"v_add_f32 v{ACC+4*t+j}, v{ACC+4*t+j}, v{R+4*t+j}")
    for t in range(4):
        y = ACC + 4*t
        k4, k0 = K + 2*t, K + 2*t + 1
        a(f"v_cvt_pk_bf16_f32 v12, v{y}, v{y+1}")
        a(f"v_cvt_pk_bf16_f32 v13, v{y+2}, v{y+3}")
        a(f"v_and_b32 v16, 0xffff0000, v{k0}")
        a(f"v_lshlrev_b32 v17, 16, v{k0}")
        a(f"v_and_b32 v18, 0xffff0000, v{k4}")
        a(f"v_lshlrev_b32 v19, 16, v{k4}")
        a(f"v_lshlrev_b32 v20, 16, v12")
        a(f"v_and_b32 v21, 0xffff0000, v12")
        a(f"v_lshlrev_b32 v22, 16, v13")
        a(f"v_and_b32 v23, 0xffff0000, v13")
        for j in range(4):
            a(f"v_fmac_f32 v{20+j}, s34, v{16+j}")
        a(f"v_cvt_pk_bf16_f32 v12, v20, v21")
        a(f"v_cvt_pk_bf16_f32 v13, v22, v23")
        a(f"ds_write_b32 v10, v12 offset:{t*512}")
        a(f"ds_write_b32 v10, v13 offset:{t*512+8}")
        a.nop(1)
    a("s_waitcnt lgkmcnt(0)")
    a("v_add_u32 v11, s33, v3")
    a("ds_read_b128 v[24:27], v11")
    a("ds_read_b128 v[28:31], v11 offset:1024")
    a("s_lshl_b32 s33, s2, 1")
    a("s_add_u32 s33, s33, s31")
    a("s_lshl_b32 s33, s33, 12")
    a("s_lshl_b32 s34, s32, 11")
    a("s_add_u32 s33, s33, s34")
    a(f"s_add_u32 s33, s33, {WS_YT}")
    a("v_add_u32 v11, s33, v3")
    a("s_waitcnt lgkmcnt(1)")
    a("buffer_store_dwordx4 v[24:27], v11, s[24:27], 0 offen")
    a("s_waitcnt lgkmcnt(0)")
    a("buffer_store_dwordx4 v[28:31], v11, s[24:27], 0 offen offset:1024")

def gen_KC(name="kc_kernel"):
    a = A()
    a.uid = 2000
    a("s_cmp_ge_u32 s2, 256")
    a("s_cbranch_scc1 Lkc_done")
    stage_C(a, "Lkc_done")
    a.label("Lkc_done")
    a("s_endpgm")
    return kernel_header(name) + a.text(), kernel_desc(name, 212, 64)

F2_KH = 49152
F2_SLOT = 16384
F2_YT = 98304
F2_LDS = F2_YT + 8192
F2_P = 0
F2_PP = 272

def stage_F2(a, done):
    a("s_and_b32 s3, s2, 7")
    a("s_lshr_b32 s4, s2, 3")
    a("s_lshr_b32 s5, s3, 1")
    a("s_lshl_b32 s5, s5, 3")
    a("s_and_b32 s6, s4, 7")
    a("s_add_u32 s40, s5, s6")
    a("s_and_b32 s5, s3, 1")
    a("s_lshl_b32 s5, s5, 2")
    a("s_lshr_b32 s6, s4, 3")
    a("s_add_u32 s41, s5, s6")
    a("s_load_dwordx2 s[4:5], s[0:1], 0")
    a(f"s_load_dwordx4 s[8:11], s[0:1], {KA_WD}")
    a(f"s_load_dwordx2 s[12:13], s[0:1], {KA_WS}")
    a("v_lshrrev_b32 v1, 6, v0")
    a("v_and_b32 v2, 63, v0")
    a("v_readfirstlane_b32 s30, v1")
    a("s_waitcnt lgkmcnt(0)")
    srd(a, 16, 4, 5, S*D*2)
    srd(a, 20, 8, 9, F*D*2)
    srd(a, 24, 12, 13, WS_SIZE)
    srd(a, 56, 10, 11, S*D*2)
    a("s_and_b32 s31, s30, 1")
    a("s_lshr_b32 s32, s30, 1")
    a("s_and_b32 s32, s32, 1")
    a("s_lshr_b32 s33, s30, 2")
    a("v_and_b32 v14, 15, v2")
    a("v_lshrrev_b32 v15, 4, v2")
    a("s_and_b32 s34, s30, 3")
    a("s_lshl_b32 s35, s40, 6")
    a("s_lshl_b32 s36, s34, 4")
    a("s_add_u32 s35, s35, s36")
    a("v_add_u32 v3, s35, v14")
    a("s_lshl_b32 s36, s41, 7")
    a("s_lshl_b32 s37, s33, 6")
    a("s_add_u32 s36, s36, s37")
    a("v_lshlrev_b32 v4, 10, v3")
    a("v_lshl_add_u32 v4, v15, 4, v4")
    a("v_add_u32 v4, s36, v4")
    a("buffer_load_dwordx4 v[8:11], v4, s[16:19], 0 offen")
    a("v_lshlrev_b32 v5, 3, v3")
    a(f"v_add_u32 v5, {WS_STATS}, v5")
    a("buffer_load_dwordx2 v[12:13], v5, s[24:27], 0 offen")
    a("v_lshrrev_b32 v5, 3, v2")
    a("v_and_b32 v6, 2, v5")
    a("s_and_b32 s36, s30, 1")
    a("s_lshl_b32 s36, s36, 2")
    a("v_or_b32 v6, s36, v6")
    a("v_and_b32 v7, 7, v2")
    a("v_xor_b32 v6, v6, v7")
    a("v_lshlrev_b32 v6, 4, v6")
    a("v_lshl_add_u32 v6, v5, 12, v6")
    a("s_lshl_b32 s36, s41, 18")
    a("s_lshl_b32 s37, s30, 15")
    a("s_add_u32 s36, s36, s37")
    a("s_lshl_b32 s37, s40, 7")
    a("s_add_u32 s36, s36, s37")
    a(f"s_add_u32 s36, s36, {WS_YT}")
    a("s_lshl_b32 s37, s30, 10")
    a(f"s_add_u32 m0, s37, {F2_YT}")
    a.nop(1)
    a("buffer_load_dwordx4 v6, s[24:27], s36 offen lds")
    a("s_lshr_b32 s42, s30, 1")
    a("s_lshr_b32 s43, s42, 1")
    a("s_and_b32 s44, s42, 1")
    a("s_mul_i32 s45, s43, 22")
    a("s_add_u32 s45, s45, s44")
    a(f"s_mul_i32 s46, s43, {F2_KH}")
    a("s_lshl_b32 s47, s44, 13")
    a("s_add_u32 s46, s46, s47")
    a("s_lshl_b32 s47, s31, 12")
    a("s_add_u32 s46, s46, s47")
    lH = a.newlabel("Lh"); lJ = a.newlabel("Lh")
    a("s_cmp_eq_u32 s31, 0")
    a(f"s_cbranch_scc0 {lH}")
    a("v_and_b32 v6, 2, v5")
    a("v_xor_b32 v6, v6, v7")
    a("v_xor_b32 v16, 4, v6")
    a("v_lshlrev_b32 v6, 4, v6")
    a("v_lshlrev_b32 v16, 4, v16")
    a("v_lshl_add_u32 v17, v5, 10, v6")
    a("v_lshl_add_u32 v18, v5, 10, v16")
    a("s_lshl_b32 s47, s41, 7")
    a("v_add_u32 v17, s47, v17")
    a("v_add_u32 v18, s47, v18")
    a("s_lshl_b32 s48, s45, 15")
    a("s_mov_b32 s49, 65536")
    a("s_mov_b32 s50, 8192")
    a("s_mov_b32 s52, s20")
    a("s_mov_b32 s53, s21")
    a("s_mov_b32 s54, s22")
    a("s_mov_b32 s55, s23")
    a(f"s_branch {lJ}")
    a.label(lH)
    a("v_lshlrev_b32 v17, 4, v2")
    a("v_mov_b32 v18, v17")
    a("s_mul_i32 s48, s40, 43")
    a("s_add_u32 s48, s48, s45")
    a("s_lshl_b32 s48, s48, 12")
    a(f"s_add_u32 s48, s48, {WS_HF}")
    a("s_mov_b32 s49, 8192")
    a("s_mov_b32 s50, 1024")
    a("s_mov_b32 s52, s24")
    a("s_mov_b32 s53, s25")
    a("s_mov_b32 s54, s26")
    a("s_mov_b32 s55, s27")
    a.label(lJ)
    def dma(I):
        slot = I % 3
        a("s_mov_b32 s51, s48")
        for e in range(4):
            a(f"s_add_u32 m0, s46, {slot*F2_SLOT + e*1024}")
            a.nop(1)
            a(f"buffer_load_dwordx4 v{17 + (e&1)}, s[52:55], s51 offen lds")
            if e < 3: a("s_add_u32 s51, s51, s50")
        a("s_add_u32 s48, s48, s49")
    dma(0); dma(1); dma(2)
    a("v_lshrrev_b32 v6, 2, v2")
    a("v_and_b32 v6, 3, v6")
    a("v_lshl_add_u32 v7, v15, 3, v6")
    a("v_lshlrev_b32 v7, 7, v7")
    a("v_and_b32 v16, 3, v2")
    a("v_and_b32 v19, 1, v16")
    a("v_lshl_add_u32 v7, v19, 3, v7")
    a("v_lshrrev_b32 v16, 1, v16")
    a("v_lshl_add_u32 v7, v16, 4, v7")
    a("v_and_b32 v6, 2, v6")
    a("v_and_b32 v16, 1, v15")
    a("v_lshl_or_b32 v6, v16, 2, v6")
    a(f"s_mul_i32 s34, s33, {F2_KH}")
    a("v_add_u32 v7, s34, v7")
    VRA = [20, 21]
    for e in range(2):
        a("s_lshl_b32 s35, s31, 2")
        a(f"s_add_u32 s35, s35, {2*e}")
        a("v_xor_b32 v16, s35, v6")
        a(f"v_lshl_add_u32 v{VRA[e]}, v16, 4, v7")
    a("s_lshl_b32 s35, s32, 11")
    a("s_add_u32 s35, s35, s34")
    a("s_add_u32 s35, s35, 4096")
    a("v_lshlrev_b32 v22, 4, v2")
    a("v_add_u32 v22, s35, v22")
    ACC = 24
    def acc(dt, st): return ACC + (dt*2 + st)*4
    FS = [40, 56]
    def reads(I, e, s):
        slot = I % 3
        r = []
        for dt in range(2):
            for hf in range(2):
                r.append(f"ds_read_b64_tr_b16 {vr(FS[s]+4*dt+2*hf,2)}, v{VRA[dt]} offset:{slot*F2_SLOT + e*8192 + hf*512}")
        for st in range(2):
            r.append(f"ds_read_b128 {vr(FS[s]+8+4*st,4)}, v22 offset:{slot*F2_SLOT + e*8192 + st*1024}")
        return r
    def part(s, first, nxt, guard=False):
        a("s_waitcnt lgkmcnt(0)")
        lab = None
        if guard:
            lab = a.newlabel("Lg")
            a("s_cmp_eq_u32 s33, 1")
            a(f"s_cbranch_scc1 {lab}")
        ri = 0
        for dt in range(2):
            for st in range(2):
                c = "0" if first else vr(acc(dt, st), 4)
                a(f"v_mfma_f32_16x16x32_bf16 {vr(acc(dt,st),4)}, {vr(FS[s]+4*dt,4)}, {vr(FS[s]+8+4*st,4)}, {c}")
                for _ in range(2):
                    if ri < len(nxt): a(nxt[ri]); ri += 1
        while ri < len(nxt):
            a(nxt[ri]); ri += 1
        if lab: a.label(lab)
    NI = 11
    a("s_waitcnt vmcnt(8)")
    a("s_barrier")
    for x in reads(0, 0, 0): a(x)
    for I in range(NI):
        part(0, I == 0, reads(I, 1, 1))
        a("s_waitcnt lgkmcnt(0)")
        if I + 1 < NI:
            a(f"s_waitcnt vmcnt({4 if I + 2 < NI else 0})")
            a("s_barrier")
            if I + 3 < NI: dma(I + 3)
            part(1, False, reads(I + 1, 0, 0))
        else:
            part(1, False, [], guard=True)
    a.nop(8)
    a("s_barrier")
    a(f"s_mul_i32 s34, s33, {64*F2_PP}")
    a(f"s_mul_i32 s35, s32, {32*F2_PP}")
    a("s_add_u32 s34, s34, s35")
    a("s_lshl_b32 s35, s31, 7")
    a("s_add_u32 s34, s34, s35")
    a(f"v_mul_u32_u24 v6, {F2_PP}, v14")
    a("v_lshl_add_u32 v6, v15, 4, v6")
    a("v_add_u32 v6, s34, v6")
    for dt in range(2):
        for st in range(2):
            a(f"ds_write_b128 v6, {vr(acc(dt,st),4)} offset:{st*16*F2_PP + dt*64}")
    a("s_waitcnt lgkmcnt(0)")
    a("s_barrier")
    a("s_and_b32 s34, s30, 3")
    a(f"s_mul_i32 s35, s34, {16*F2_PP}")
    a("s_lshl_b32 s36, s33, 7")
    a("s_add_u32 s35, s35, s36")
    a(f"v_mul_u32_u24 v6, {F2_PP}, v14")
    a("v_lshl_add_u32 v6, v15, 5, v6")
    a("v_add_u32 v6, s35, v6")
    a("ds_read_b128 v[40:43], v6")
    a("ds_read_b128 v[44:47], v6 offset:16")
    a(f"ds_read_b128 v[48:51], v6 offset:{64*F2_PP}")
    a(f"ds_read_b128 v[52:55], v6 offset:{64*F2_PP+16}")
    a("v_lshrrev_b32 v7, 2, v2")
    a("v_and_b32 v7, 3, v7")
    a("v_and_b32 v16, 2, v7")
    a("v_and_b32 v17, 1, v15")
    a("v_lshl_or_b32 v16, v17, 2, v16")
    a("v_and_b32 v17, 3, v2")
    a("v_lshrrev_b32 v18, 1, v17")
    a("s_lshl_b32 s35, s34, 1")
    a("v_add_u32 v18, s35, v18")
    a("v_xor_b32 v18, v18, v16")
    a("v_lshlrev_b32 v18, 4, v18")
    a("v_and_b32 v17, 1, v17")
    a("v_lshl_add_u32 v18, v17, 3, v18")
    a("v_lshl_add_u32 v7, v15, 3, v7")
    a("v_lshl_add_u32 v18, v7, 7, v18")
    a("s_lshl_b32 s35, s33, 12")
    a(f"s_add_u32 s35, s35, {F2_YT}")
    a("v_add_u32 v18, s35, v18")
    a("ds_read_b64_tr_b16 v[56:57], v18")
    a("ds_read_b64_tr_b16 v[58:59], v18 offset:512")
    a("s_mov_b32 s36, 0xbfb8aa3b")
    a("s_waitcnt lgkmcnt(0) vmcnt(0)")
    for j in range(8):
        a(f"v_add_f32 v{40+j}, v{40+j}, v{48+j}")
    for j in range(8):
        a(f"v_mul_f32 v{48+j}, s36, v{40+j}")
    for j in range(8):
        a(f"v_exp_f32 v{48+j}, v{48+j}")
    for m in range(4):
        a(f"v_lshlrev_b32 v{60+2*m}, 16, v{8+m}")
        a(f"v_and_b32 v{61+2*m}, 0xffff0000, v{8+m}")
        a(f"v_lshlrev_b32 v{68+2*m}, 16, v{56+m}")
        a(f"v_and_b32 v{69+2*m}, 0xffff0000, v{56+m}")
    for j in range(8):
        a(f"v_add_f32 v{48+j}, 1.0, v{48+j}")
    for j in range(8):
        a(f"v_rcp_f32 v{48+j}, v{48+j}")
    for j in range(8):
        a(f"v_sub_f32 v{76+j}, v{60+j}, v12")
    for j in range(8):
        a(f"v_mul_f32 v{76+j}, v{76+j}, v13")
    for j in range(8):
        a(f"v_mul_f32 v{40+j}, v{40+j}, v{48+j}")
    for j in range(8):
        a(f"v_mul_f32 v{76+j}, v{76+j}, v{68+j}")
    for j in range(8):
        a(f"v_fmac_f32 v{60+j}, v{76+j}, v{40+j}")
    for m in range(4):
        a(f"v_cvt_pk_bf16_f32 v{8+m}, v{60+2*m}, v{61+2*m}")
    a("buffer_store_dwordx4 v[8:11], v4, s[56:59], 0 offen")

def gen_KF2(name="kf2_kernel"):
    a = A()
    a.uid = 3000
    a("s_cmp_ge_u32 s2, 256")
    a("s_cbranch_scc1 Lkf2_done")
    stage_F2(a, "Lkf2_done")
    a.label("Lkf2_done")
    a("s_endpgm")
    return kernel_header(name) + a.text(), kernel_desc(name, 88, 64)

HEADER = open("recurrent_scan__ssm_conv_h3__glu_gated_geglu__prompt.s.ref").read().split("; Override")[0]

def build_list(parts):
    s = HEADER
    for name, _, grid, block, lds in parts:
        s += f"; @launch kernel={name} grid=({grid},1,1) block=({block},1,1) lds={lds}\n"
    s += '.amdgcn_target "amdgcn-amd-amdhsa--gfx950"\n.text\n'
    for name, (code, desc), *_ in parts:
        s += code
    s += '.section .rodata,"a"\n.p2align 6\n'
    for name, (code, desc), *_ in parts:
        s += desc
    return s

if __name__ == "__main__":
    import sys
    parts = [("ka_kernel", gen_KA(), 256, 512, 8192),
             ("kf1_kernel", gen_KF1(), 256, 512, F1_LDS),
             ("kc_kernel", gen_KC(), 256, 256, C_LDS),
             ("kf2_kernel", gen_KF2(), 256, 512, F2_LDS)]
    open(sys.argv[1], "w").write(build_list(parts))
```

```python
class A:
    def __init__(self):
        self.l = []
        self.uid = 0
    def __call__(self, s):
        for line in s.split("\n"):
            line = line.strip()
            if line:
                self.l.append("    " + line if not line.endswith(":") else line)
    def c(self, s):
        self.l.append("    ; " + s)
    def label(self, name):
        self.l.append(name + ":")
    def newlabel(self, p="L"):
        self.uid += 1
        return f"{p}_{self.uid}"
    def nop(self, n):
        while n > 0:
            k = min(n, 16)
            self.l.append(f"    s_nop {k-1}")
            n -= k
    def text(self):
        return "\n".join(self.l) + "\n"

def vr(b, n=1):
    return f"v{b}" if n == 1 else f"v[{b}:{b+n-1}]"
def ar(b, n=1):
    return f"a{b}" if n == 1 else f"a[{b}:{b+n-1}]"
def sr(b, n=1):
    return f"s{b}" if n == 1 else f"s[{b}:{b+n-1}]"

def srd(a, dst, lo, hi, nbytes):
    a(f"s_mov_b32 s{dst}, s{lo}")
    a(f"s_and_b32 s{dst+1}, s{hi}, 0xffff")
    a(f"s_mov_b32 s{dst+2}, {nbytes}")
    a(f"s_mov_b32 s{dst+3}, 0x00020000")

def kernel_header(name):
    return f""".globl {name}
.p2align 8
.type {name},@function
{name}:
"""

def kernel_desc(name, vgpr, sgpr=96, accum=None):
    if accum is None:
        accum = (vgpr + 3) // 4 * 4
    return f""".amdhsa_kernel {name}
  .amdhsa_next_free_vgpr {vgpr}
  .amdhsa_next_free_sgpr {sgpr}
  .amdhsa_accum_offset {accum}
  .amdhsa_group_segment_fixed_size 0
  .amdhsa_kernarg_size 104
  .amdhsa_user_sgpr_count 2
  .amdhsa_user_sgpr_kernarg_segment_ptr 1
  .amdhsa_system_sgpr_workgroup_id_x 1
.end_amdhsa_kernel
"""

PROF = False
STAMP_BASE = 64
WS_PROF = 0xF000000
class Stamps:
    n = 0
def stamp(a):
    if not PROF: return
    i = Stamps.n; Stamps.n += 1
    assert i < 16
    a(f"s_memtime s[{STAMP_BASE+2*i}:{STAMP_BASE+2*i+1}]")
def stamp_reset():
    Stamps.n = 0
def stamp_dump(a, ws_srd, kidx, vtmp=200):
    if not PROF: return
    n = Stamps.n
    a("s_waitcnt lgkmcnt(0)")
    a("s_lshl_b32 s60, s2, 3")
    a("s_add_u32 s60, s60, s30")
    a("s_lshl_b32 s60, s60, 7")
    a(f"s_add_u32 s60, s60, {WS_PROF + kidx*0x80000}")
    a(f"v_mov_b32 v{vtmp}, s60")
    for i in range(n):
        a(f"v_mov_b32 v{vtmp+1}, s{STAMP_BASE+2*i}")
        a(f"buffer_store_dword v{vtmp+1}, v{vtmp}, s[{ws_srd}:{ws_srd+3}], 0 offen offset:{4*i}")
        a.nop(2)
```

```python
import sys, struct
import asmlib
from asmlib import *

NAME = "recurrent_scan__ssm_conv_h3__glu_gated_geglu__prompt_kernel"
S, D, F = 2048, 512, 1376
KA_Q, KA_K, KA_V, KA_SK, KA_H, KA_DD, KA_BX, KA_WG, KA_WU, KA_WD, KA_OUT, KA_DBG, KA_WS = [8*i for i in range(13)]

WS_KVT   = 0x000000
WS_STATS = 0x200000
WS_CSP   = 0x210000
WS_FLAG  = 0x300000
FL_AS, FL_AK, FL_CS, FL_C, FL_H = 0, 16, 24, 40, 48
WS_HF    = 0x400000
WS_YT    = 0xA00000
WS_SIZE  = 0x10000000

def f2u(x): return struct.unpack("<I", struct.pack("<f", x))[0]

S_W = 3
R_Q, R_WS, R_W, R_K, R_V, R_SK, R_DBG = 4, 8, 12, 16, 20, 24, 28
R_H, R_WD, R_OUT = R_K, R_V, R_SK
S_RB, S_SL, S_NONCE, S_RB2, S_CB, S_JJ = 32, 33, 36, 37, 38, 39
S_A, S_B = 34, 35
S_DD = 63

F1_WSLOT = 24576
F1_QBASE = 73728
F1_QSLOT = 16384
L_CS = 122880
L_ST = L_CS + 768
L_NON = L_ST + 1024
L_CF = L_NON + 16
L_CONV = L_CF + 16
C_HEV, C_HO, C_XO, C_XE = 0, 4224, 8448, 13056
C_CH = 17664
LDS_TOTAL = 163840
assert L_CONV + 2*C_CH <= LDS_TOTAL
L_RED = 0
F2_SLOT = 16384
F2_NSLOT = 6
F2_LW = 98304
F2_YT = F2_LW + 14*4096
F2_P = 0
F2_PP = 272
NRES = 15

POLL_MAX = 20000

def wave_sum16(a, v):
    a(f"v_add_f32_dpp v{v}, v{v}, v{v} quad_perm:[1,0,3,2] row_mask:0xf bank_mask:0xf")
    a.nop(2)
    a(f"v_add_f32_dpp v{v}, v{v}, v{v} quad_perm:[2,3,0,1] row_mask:0xf bank_mask:0xf")
    a.nop(2)
    a(f"v_add_f32_dpp v{v}, v{v}, v{v} row_half_mirror row_mask:0xf bank_mask:0xf")
    a.nop(2)
    a(f"v_add_f32_dpp v{v}, v{v}, v{v} row_mirror row_mask:0xf bank_mask:0xf")

def wave_sum64(a, v, s0):
    a.nop(2)
    wave_sum16(a, v)
    a.nop(1)
    for i in range(4):
        a(f"v_readlane_b32 s{s0+i}, v{v}, {16*i}")
    a.nop(2)
    a(f"v_mov_b32 v{v}, s{s0}")
    for i in range(1, 4):
        a(f"v_add_f32 v{v}, s{s0+i}, v{v}")

def ptr_srd(a, dst, lo, nbytes):
    srd(a, dst, lo, lo + 1, nbytes)

def get_nonce(a, vt):
    lab = a.newlabel("Lnon"); out = a.newlabel("Lnon")
    a(f"s_cmp_lg_u32 s{S_NONCE}, 0")
    a(f"s_cbranch_scc1 {out}")
    a("s_mov_b32 s40, 0")
    a(f"v_mov_b32 v{vt}, 0")
    a.label(lab)
    a(f"buffer_load_dword v{vt+1}, v{vt}, s[{R_DBG}:{R_DBG+3}], 0 offen sc1")
    a("s_add_u32 s40, s40, 1")
    a("s_waitcnt vmcnt(0)")
    a(f"v_readfirstlane_b32 s{S_NONCE}, v{vt+1}")
    a(f"s_cmp_ge_u32 s40, {POLL_MAX}")
    a(f"s_cbranch_scc1 {out}")
    a(f"s_cmp_eq_u32 s{S_NONCE}, 0")
    a(f"s_cbranch_scc1 {lab}")
    a.label(out)

def publish(a, vt, addr_sgprs):
    a(f"v_mov_b32 v{vt+1}, s{S_NONCE}")
    a("s_mov_b64 exec, 1")
    for s in addr_sgprs:
        a(f"v_mov_b32 v{vt}, s{s}")
        a(f"buffer_store_dword v{vt+1}, v{vt}, s[{R_WS}:{R_WS+3}], 0 offen sc1")
        a.nop(1)
    a("s_mov_b64 exec, -1")

def poll(a, vaddr, vt, first_issued=False):
    lab = a.newlabel("Lpoll"); out = a.newlabel("Lpoll"); chk = a.newlabel("Lpoll")
    a("s_mov_b32 s40, 0")
    if first_issued:
        a(f"s_branch {chk}")
    a.label(lab)
    a(f"buffer_load_dword v{vt}, v{vaddr}, s[{R_WS}:{R_WS+3}], 0 offen sc1")
    a.label(chk)
    a("s_add_u32 s40, s40, 1")
    a("s_waitcnt vmcnt(0)")
    a(f"v_cmp_ne_u32 vcc, s{S_NONCE}, v{vt}")
    a(f"s_cmp_ge_u32 s40, {POLL_MAX}")
    a(f"s_cbranch_scc1 {out}")
    a(f"s_cbranch_vccnz {lab}")
    a.label(out)

def interleave(a, m, fills):
    for i, x in enumerate(m):
        a(x)
        for y in fills[i]: a(y)

def spread(n_m, items, start=0, per=1):
    f = [[] for _ in range(n_m)]
    i = start
    for k, x in enumerate(items):
        slot = min(start + k // per, n_m - 1)
        f[slot].append(x)
    return f

VFQ, VFS, VFO = 236, 240, 242
FL_C2 = 112

def prologue(a):
    a("s_cmp_ge_u32 s2, 256")
    a("s_cbranch_scc1 Ldone")
    stamp(a)
    a("s_load_dwordx4 s[40:43], s[0:1], 0")
    a("s_load_dwordx4 s[44:47], s[0:1], 16")
    a(f"s_load_dwordx4 s[48:51], s[0:1], {KA_WG}")
    a(f"s_load_dwordx4 s[52:55], s[0:1], {KA_DBG}")
    a("v_lshrrev_b32 v1, 6, v0")
    a("v_and_b32 v2, 63, v0")
    a(f"v_readfirstlane_b32 s{S_W}, v1")
    a("v_and_b32 v3, 15, v2")
    a("v_lshrrev_b32 v4, 4, v2")
    a("s_and_b32 s56, s2, 7")
    a("s_lshr_b32 s57, s2, 3")
    a("s_and_b32 s58, s56, 1")
    a("s_lshl_b32 s58, s58, 3")
    a("s_and_b32 s59, s57, 7")
    a(f"s_add_u32 s{S_RB}, s58, s59")
    a("s_lshr_b32 s58, s56, 1")
    a("s_lshl_b32 s58, s58, 2")
    a("s_lshr_b32 s59, s57, 3")
    a(f"s_add_u32 s{S_SL}, s58, s59")
    a("s_lshr_b32 s58, s56, 1")
    a("s_lshl_b32 s58, s58, 3")
    a("s_and_b32 s59, s57, 7")
    a(f"s_add_u32 s{S_RB2}, s58, s59")
    a("s_and_b32 s58, s56, 1")
    a("s_lshl_b32 s58, s58, 2")
    a("s_lshr_b32 s59, s57, 3")
    a(f"s_add_u32 s{S_CB}, s58, s59")
    a(f"s_mov_b32 s{S_NONCE}, 0")
    a("s_waitcnt lgkmcnt(0)")
    ptr_srd(a, R_Q, 40, S*D*2)
    ptr_srd(a, R_WS, 54, WS_SIZE)
    ptr_srd(a, R_DBG, 52, 256)
    a(f"s_cmp_ge_u32 s{S_W}, 4")
    a("s_cbranch_scc1 LY")

def final_loads(a):
    a(f"s_and_b32 s56, s{S_W}, 3")
    a(f"s_lshl_b32 s57, s{S_RB2}, 6")
    a("s_lshl_b32 s58, s56, 4")
    a("s_add_u32 s57, s57, s58")
    a("v_add_u32 v5, s57, v3")
    a(f"s_lshl_b32 s58, s{S_CB}, 7")
    a(f"s_lshr_b32 s59, s{S_W}, 2")
    a("s_lshl_b32 s59, s59, 6")
    a("s_add_u32 s58, s58, s59")
    a("v_lshlrev_b32 v6, 10, v5")
    a("v_lshl_add_u32 v6, v4, 4, v6")
    a(f"v_add_u32 v{VFO}, s58, v6")
    a(f"buffer_load_dwordx4 {vr(VFQ,4)}, v{VFO}, s[{R_Q}:{R_Q+3}], 0 offen")
    a("v_lshlrev_b32 v6, 3, v5")
    a(f"v_add_u32 v6, {WS_STATS}, v6")
    a(f"buffer_load_dwordx2 {vr(VFS,2)}, v6, s[{R_WS}:{R_WS+3}], 0 offen sc1")

def tr_lane128(a, vdst, vf, t0, t1):
    a(f"v_lshrrev_b32 v{t0}, 2, v2")
    a(f"v_and_b32 v{t0}, 3, v{t0}")
    a(f"v_lshl_add_u32 v{vdst}, v4, 3, v{t0}")
    a(f"v_lshlrev_b32 v{vdst}, 7, v{vdst}")
    a(f"v_and_b32 v{t1}, 3, v2")
    a(f"v_and_b32 v{vf}, 1, v{t1}")
    a(f"v_lshl_add_u32 v{vdst}, v{vf}, 3, v{vdst}")
    a(f"v_lshrrev_b32 v{t1}, 1, v{t1}")
    a(f"v_lshl_add_u32 v{vdst}, v{t1}, 4, v{vdst}")
    a(f"v_and_b32 v{t0}, 2, v{t0}")
    a(f"v_and_b32 v{t1}, 1, v4")
    a(f"v_lshl_or_b32 v{vf}, v{t1}, 2, v{t0}")

def tr_lane192(a, vdst, v2g, t0, t1):
    a(f"v_lshrrev_b32 v{t0}, 2, v2")
    a(f"v_and_b32 v{t0}, 3, v{t0}")
    a(f"v_lshl_add_u32 v{t0}, v4, 3, v{t0}")
    a(f"v_mul_u32_u24 v{vdst}, 192, v{t0}")
    a(f"v_and_b32 v{t0}, 3, v2")
    a(f"v_and_b32 v{t1}, 1, v{t0}")
    a(f"v_lshl_add_u32 v{vdst}, v{t1}, 3, v{vdst}")
    a(f"v_lshrrev_b32 v{t0}, 1, v{t0}")
    a(f"v_lshl_add_u32 v{vdst}, v{t0}, 4, v{vdst}")
    a(f"v_and_b32 v{v2g}, 1, v4")
    a(f"v_lshlrev_b32 v{v2g}, 1, v{v2g}")

def path_X(a):
    ptr_srd(a, R_K, 42, S*D*2)
    ptr_srd(a, R_V, 44, S*D*2)
    ptr_srd(a, R_SK, 46, D*4*2)
    a("v_mov_b32 v111, 0")
    a(f"buffer_load_dword v112, v111, s[{R_DBG}:{R_DBG+3}], 0 offen sc1")
    a("s_lshr_b32 s56, s2, 3")
    a("s_and_b32 s57, s2, 7")
    a("v_and_b32 v1, 7, v0")
    a("v_lshrrev_b32 v5, 3, v0")
    a("s_lshl_b32 s58, s56, 16")
    a("s_lshl_b32 s59, s57, 7")
    a("s_add_u32 s58, s58, s59")
    a("v_lshlrev_b32 v6, 11, v5")
    a("v_lshl_add_u32 v6, v1, 4, v6")
    a("v_add_u32 v6, s58, v6")
    for i in range(5):
        a(f"v_add_u32 v{44+i}, {(i-3)*1024 & 0xffffffff}, v6")
    for i in range(5):
        a(f"buffer_load_dwordx4 {vr(8+4*i,4)}, v{44+i}, s[{R_K}:{R_K+3}], 0 offen")
    a(f"buffer_load_dwordx4 v[28:31], v6, s[{R_V}:{R_V+3}], 0 offen")
    a(f"buffer_load_dwordx4 v[32:35], v6, s[{R_V}:{R_V+3}], 0 offen offset:1024")
    a("s_lshl_b32 s59, s57, 9")
    a("v_lshlrev_b32 v7, 6, v1")
    a("v_add_u32 v7, s59, v7")
    for i in range(4):
        a(f"buffer_load_dwordx4 {vr(52+4*i,4)}, v7, s[{R_SK}:{R_SK+3}], 0 offen offset:{16*i}")
    a("s_lshl_b32 s59, s2, 13")
    a(f"s_lshl_b32 s58, s{S_W}, 11")
    a("s_add_u32 s59, s59, s58")
    a("v_lshl_add_u32 v49, v2, 4, s59")
    a(f"buffer_load_dwordx4 v[36:39], v49, s[{R_Q}:{R_Q+3}], 0 offen")
    a(f"buffer_load_dwordx4 v[40:43], v49, s[{R_Q}:{R_Q+3}], 0 offen offset:1024")
    lab = a.newlabel("Lw0")
    a(f"s_or_b32 s56, s2, s{S_W}")
    a("s_cmp_lg_u32 s56, 0")
    a(f"s_cbranch_scc1 {lab}")
    a("s_memrealtime s[56:57]")
    a("s_waitcnt lgkmcnt(0)")
    a(f"s_or_b32 s{S_NONCE}, s56, 1")
    a("v_mov_b32 v50, 0")
    a(f"v_mov_b32 v51, s{S_NONCE}")
    a("s_mov_b64 exec, 1")
    a(f"buffer_store_dword v51, v50, s[{R_DBG}:{R_DBG+3}], 0 offen sc1")
    a("s_mov_b64 exec, -1")
    a.label(lab)
    S_WS2, S_WF = S_A, S_B
    a(f"s_and_b32 s{S_WS2}, s{S_W}, 1")
    a(f"s_lshr_b32 s{S_WF}, s{S_W}, 1")
    VRQ = [[212 + 2*s + ks for ks in range(2)] for s in range(3)]
    VRW = [[[218 + 6*s + 3*gu + t for t in range(3)] for gu in range(2)] for s in range(3)]
    a("v_lshrrev_b32 v6, 1, v3")
    a(f"s_lshl_b32 s56, s{S_WS2}, 13")
    a(f"s_add_u32 s56, s56, {F1_QBASE}")
    for ks in range(2):
        a(f"v_add_u32 v7, {4*ks}, v4")
        a("v_xor_b32 v7, v7, v6")
        a("v_lshlrev_b32 v7, 4, v7")
        a("v_lshl_add_u32 v7, v3, 7, v7")
        a(f"v_add_u32 v{VRQ[0][ks]}, s56, v7")
        for s in (1, 2):
            a(f"v_add_u32 v{VRQ[s][ks]}, {s*F1_QSLOT}, v{VRQ[0][ks]}")
    tr_lane192(a, 6, 7, 50, 51)
    a(f"s_mul_i32 s56, s{S_WF}, 6")
    for t in range(3):
        a(f"s_add_u32 s57, s56, {2*t}")
        a("v_xor_b32 v50, s57, v7")
        a(f"v_lshl_add_u32 v{VRW[0][0][t]}, v50, 4, v6")
        for s in range(3):
            for gu in range(2):
                if s == 0 and gu == 0: continue
                a(f"v_add_u32 v{VRW[s][gu][t]}, {s*F1_WSLOT + gu*12288}, v{VRW[0][0][t]}")
    ACC = 116
    FS = [8, 48]
    for i in range(96):
        a(f"v_mov_b32 v{ACC+i}, 0")
    a("v_lshrrev_b32 v88, 2, v5")
    a("v_sub_u32 v88, 7, v88")
    a("v_xor_b32 v88, v88, v1")
    a("v_lshlrev_b32 v88, 4, v88")
    a("v_and_b32 v89, 3, v5")
    a("v_lshlrev_b32 v89, 2, v89")
    a("v_sub_u32 v89, 12, v89")
    a("v_add_u32 v88, v88, v89")
    a("v_lshl_add_u32 v88, v1, 10, v88")
    a(f"v_add_u32 v88, {L_CONV}, v88")
    a("s_mov_b32 s40, 0x05040100")
    a("s_mov_b32 s41, 0x07060302")
    stamp(a)
    a("s_waitcnt vmcnt(2)")
    stamp(a)
    for row in range(2):
        R = 90 + 8*row
        k3, k2, k1, k0 = 20 + 4*row, 16 + 4*row, 12 + 4*row, 8 + 4*row
        for m in range(4):
            for half in range(2):
                e = 2*m + half
                sel = "s40" if half == 0 else "s41"
                a(f"v_perm_b32 v{68+2*e}, v{k2+m}, v{k3+m}, {sel}")
                a(f"v_perm_b32 v{69+2*e}, v{k0+m}, v{k1+m}, {sel}")
        for e in range(8):
            a(f"v_dot2_f32_bf16 v{R+e}, v{68+2*e}, v{52+2*e}, 0")
        for e in range(8):
            a(f"v_dot2_f32_bf16 v{R+e}, v{69+2*e}, v{53+2*e}, v{R+e}")
        V = 28 + 4*row
        for m in range(4):
            a(f"v_lshlrev_b32 v{68+2*m}, 16, v{V+m}")
            a(f"v_and_b32 v{69+2*m}, 0xffff0000, v{V+m}")
        for e in range(8):
            a(f"v_mul_f32 v{R+e}, v{R+e}, v{68+e}")
    for e in range(8):
        a(f"v_cvt_pk_bf16_f32 v{68+e}, v{98+e}, v{90+e}")
    for e in range(8):
        a(f"ds_write_b32 v88, v{68+e} offset:{e*128}")
    a("s_waitcnt vmcnt(0)")
    a("v_mov_b32 v76, 0x3f803f80")
    for row in range(2):
        Q = 36 + 4*row
        a("v_mov_b32 v77, 0")
        for m in range(4):
            a(f"v_dot2_f32_bf16 v77, v{Q+m}, v76, v77")
        a.nop(3)
        wave_sum64(a, 77, 56)
        a("v_mul_f32 v77, 0x3b000000, v77")
        for m in range(4):
            a(f"v_lshlrev_b32 v{78+2*m}, 16, v{Q+m}")
            a(f"v_and_b32 v{79+2*m}, 0xffff0000, v{Q+m}")
        for e in range(8):
            a(f"v_sub_f32 v{78+e}, v{78+e}, v77")
        a("v_mul_f32 v86, v78, v78")
        for e in range(1, 8):
            a(f"v_fmac_f32 v86, v{78+e}, v{78+e}")
        wave_sum64(a, 86, 56)
        a(f"v_mov_b32 v{107+2*row}, 0x3727c5ac")
        a(f"v_fmac_f32 v{107+2*row}, 0x3b000000, v86")
        a(f"v_rsq_f32 v{107+2*row}, v{107+2*row}")
        a(f"v_mov_b32 v{106+2*row}, v77")
    a("s_lshl_b32 s59, s2, 6")
    a(f"s_lshl_b32 s58, s{S_W}, 4")
    a("s_add_u32 s59, s59, s58")
    a(f"s_add_u32 s59, s59, {WS_STATS}")
    a("v_mov_b32 v110, s59")
    a("s_mov_b64 exec, 1")
    a(f"buffer_store_dwordx4 v[106:109], v110, s[{R_WS}:{R_WS+3}], 0 offen sc1")
    a("s_mov_b64 exec, -1")
    lab = a.newlabel("Lnn")
    a(f"s_cmp_lg_u32 s{S_W}, 0")
    a(f"s_cbranch_scc1 {lab}")
    l2 = a.newlabel("Lnn")
    a(f"s_cmp_lg_u32 s{S_NONCE}, 0")
    a(f"s_cbranch_scc1 {l2}")
    a(f"v_readfirstlane_b32 s{S_NONCE}, v112")
    get_nonce(a, 111)
    a.label(l2)
    a(f"v_mov_b32 v111, {L_NON}")
    a(f"v_mov_b32 v112, s{S_NONCE}")
    a("ds_write_b32 v111, v112")
    for i in range(4): a(f"v_mov_b32 v{112+i}, 0")
    a("ds_write_b128 v111, v[112:115] offset:16")
    a.label(lab)
    a("s_waitcnt lgkmcnt(0)")
    stamp(a)
    a("s_barrier")
    stamp(a)
    a(f"v_mov_b32 v111, {L_NON}")
    a("ds_read_b32 v112, v111")
    a("v_lshrrev_b32 v5, 3, v2")
    a("v_and_b32 v1, 7, v2")
    a(f"s_lshl_b32 s56, s{S_W}, 4")
    a("v_add_u32 v5, s56, v5")
    for e in range(2):
        a(f"v_add_u32 v6, {8*e}, v5")
        a("v_lshrrev_b32 v7, 3, v6")
        a("v_xor_b32 v7, v7, v1")
        a("v_lshlrev_b32 v7, 4, v7")
        a("v_lshl_add_u32 v7, v6, 7, v7")
        a(f"v_add_u32 v7, {L_CONV}, v7")
        a(f"ds_read_b128 {vr(88+4*e,4)}, v7")
    def acc(st, t, gu): return ACC + ((st*3 + t)*2 + gu)*4
    def fq(s, st): return FS[s] + 4*st
    def fw(s, gu, t): return FS[s] + 16 + (gu*3 + t)*4
    def reads(slot, ks, s):
        r = []
        for t in range(3):
            for gu in range(2):
                for hf in range(2):
                    r.append(f"ds_read_b64_tr_b16 {vr(fw(s, gu, t) + 2*hf, 2)}, v{VRW[slot][gu][t]} offset:{(32*ks + 4*hf)*192}")
        q = [f"ds_read_b128 {vr(fq(s, st), 4)}, v{VRQ[slot][ks]} offset:{st*2048}" for st in range(4)]
        return q + r
    for x in reads(0, 0, 0): a(x)
    a("s_lshr_b32 s56, s2, 3")
    a("s_and_b32 s57, s2, 7")
    a("s_lshl_b32 s59, s57, 18")
    a("s_lshl_b32 s58, s56, 7")
    a("s_sub_u32 s59, s59, s58")
    a(f"s_add_u32 s59, s59, {WS_KVT + 1984*2}")
    a("v_lshlrev_b32 v96, 12, v5")
    a("v_lshl_add_u32 v96, v1, 4, v96")
    a("v_add_u32 v96, s59, v96")
    a("v_add_u32 v97, 32768, v96")
    a("s_waitcnt lgkmcnt(0)")
    a(f"v_readfirstlane_b32 s{S_NONCE}, v112")
    a(f"buffer_store_dwordx4 v[88:91], v96, s[{R_WS}:{R_WS+3}], 0 offen sc1")
    a(f"buffer_store_dwordx4 v[92:95], v97, s[{R_WS}:{R_WS+3}], 0 offen sc1")
    def mfmas(s):
        m = []
        for t in range(3):
            for gu in range(2):
                for st in range(4):
                    m.append(f"v_mfma_f32_16x16x32_bf16 {vr(acc(st,t,gu),4)}, {vr(fw(s,gu,t),4)}, {vr(fq(s,st),4)}, {vr(acc(st,t,gu),4)}")
        return m
    def part(s_cur, nxt):
        a("s_waitcnt lgkmcnt(0)")
        interleave(a, mfmas(s_cur), spread(24, nxt, 0, 1))
    a(f"s_mov_b32 s{S_JJ}, 0")
    a.label("Lx_f1_loop")
    for u in range(3):
        part(0, reads(u, 1, 1))
        a("s_waitcnt lgkmcnt(0)")
        if u == 1:
            a("s_waitcnt vmcnt(0)")
        a("s_barrier")
        part(1, reads((u + 1) % 3, 0, 0))
        if u == 1:
            a(f"s_cmp_eq_u32 s{S_JJ}, 2")
            a("s_cbranch_scc1 Lx_f1_done")
    a(f"s_add_u32 s{S_JJ}, s{S_JJ}, 1")
    a("s_branch Lx_f1_loop")
    a.label("Lx_f1_done")
    a("s_waitcnt lgkmcnt(0)")
    stamp(a)
    CSD, STR = 8, 32
    a(f"s_mul_i32 s56, s{S_WF}, 192")
    a(f"s_add_u32 s56, s56, {L_CS}")
    a("v_lshl_add_u32 v6, v4, 4, s56")
    for gu in range(2):
        for t in range(3):
            a(f"ds_read_b128 {vr(CSD + (gu*3+t)*4, 4)}, v6 offset:{gu*384 + t*64}")
    a(f"s_lshl_b32 s56, s{S_WS2}, 9")
    a(f"s_add_u32 s56, s56, {L_ST}")
    a("v_lshl_add_u32 v6, v3, 3, s56")
    for st in range(4):
        a(f"ds_read_b64 {vr(STR+2*st,2)}, v6 offset:{st*128}")
    c1 = 2.0 * (2.0 / 3.141592653589793) ** 0.5 * 1.4426950408889634
    c2 = c1 * 0.044715
    a(f"v_mov_b32 v40, 0x{f2u(-c1):08x}")
    a(f"v_mov_b32 v41, 0x{f2u(-c2):08x}")
    a(f"s_lshl_b32 s56, s{S_RB}, 1")
    a(f"s_add_u32 s56, s56, s{S_WS2}")
    a("s_mov_b32 s58, s56")
    a("s_mul_i32 s56, s56, 43")
    a(f"s_mul_i32 s57, s{S_SL}, 3")
    a("s_add_u32 s56, s56, s57")
    a("s_lshl_b32 s56, s56, 12")
    a(f"s_add_u32 s56, s56, {WS_HF}")
    a("v_and_b32 v42, 1, v4")
    a("v_lshlrev_b32 v42, 10, v42")
    a("v_lshrrev_b32 v43, 1, v4")
    a("v_lshl_add_u32 v42, v43, 8, v42")
    a("v_lshl_add_u32 v42, v3, 4, v42")
    a("v_add_u32 v42, s56, v42")
    S_FH = 60
    a("s_lshl_b32 s58, s58, 8")
    a(f"s_lshl_b32 s57, s{S_SL}, 1")
    a(f"s_add_u32 s57, s57, s{S_WF}")
    a("s_lshl_b32 s57, s57, 2")
    a("s_add_u32 s58, s58, s57")
    a(f"s_add_u32 s{S_FH}, s58, {WS_FLAG + FL_H*128}")
    a("s_waitcnt lgkmcnt(0)")
    T = 44
    for st in range(4):
        a(f"v_rcp_f32 v{64+st}, v{STR+2*st+1}")
        a(f"v_sub_f32 v{STR+2*st}, 0, v{STR+2*st}")
    for t in range(3):
        a(f"s_mul_i32 s56, s{S_WF}, 3")
        a(f"s_add_u32 s56, s56, {t}")
        a("s_lshr_b32 s57, s56, 1")
        a("s_and_b32 s56, s56, 1")
        a("s_lshl_b32 s56, s56, 9")
        a("s_lshl_b32 s59, s57, 12")
        a("s_add_u32 s56, s56, s59")
        a(f"s_mul_i32 s59, s{S_SL}, 3")
        a("s_add_u32 s59, s59, s57")
        a("s_cmp_lt_u32 s59, 43")
        a("s_cselect_b32 s56, s56, 0x7ff00000")
        for p in range(2):
            O = 48 + 4*((t*2 + p) % 4)
            for sti in range(2):
                st = 2*p + sti
                nm, rs, istd = STR + 2*st, STR + 2*st + 1, 64 + st
                g0, u0 = acc(st, t, 0), acc(st, t, 1)
                cg, cu = CSD + t*4, CSD + (3 + t)*4
                for j in range(4): a(f"v_fmac_f32 v{g0+j}, v{nm}, v{cg+j}")
                for j in range(4): a(f"v_fmac_f32 v{u0+j}, v{nm}, v{cu+j}")
                for j in range(4): a(f"v_mul_f32 v{g0+j}, v{rs}, v{g0+j}")
                for j in range(4): a(f"v_mul_f32 v{T+j}, v{g0+j}, v{g0+j}")
                for j in range(4): a(f"v_fma_f32 v{T+j}, v{T+j}, v41, v40")
                for j in range(4): a(f"v_mul_f32 v{T+j}, v{T+j}, v{g0+j}")
                for j in range(4): a(f"v_exp_f32 v{T+j}, v{T+j}")
                for j in range(4): a(f"v_mul_f32 v{u0+j}, v{u0+j}, v{g0+j}")
                for j in range(4): a(f"v_fma_f32 v{T+j}, v{T+j}, v{istd}, v{istd}")
                for j in range(4): a(f"v_rcp_f32 v{T+j}, v{T+j}")
                a.nop(1)
                for j in range(4): a(f"v_mul_f32 v{u0+j}, v{u0+j}, v{T+j}")
                a(f"v_cvt_pk_bf16_f32 v{O+2*sti}, v{u0}, v{u0+1}")
                a(f"v_cvt_pk_bf16_f32 v{O+2*sti+1}, v{u0+2}, v{u0+3}")
            a.nop(2)
            a(f"v_permlane16_swap_b32 v{O}, v{O+2}")
            a(f"v_permlane16_swap_b32 v{O+1}, v{O+3}")
            a(f"buffer_store_dwordx4 {vr(O,4)}, v42, s[{R_WS}:{R_WS+3}], s56 offen offset:{p*2048} sc1")
    stamp(a)
    a("s_waitcnt vmcnt(0)")
    publish(a, 68, [S_FH])
    stamp(a)
    a("s_barrier")
    S_DH, S_KH = S_A, S_B
    a(f"s_and_b32 s{S_DH}, s{S_W}, 1")
    a(f"s_lshr_b32 s{S_KH}, s{S_W}, 1")
    tr_lane128(a, 7, 6, 16, 19)
    VRA = [20, 21]
    for e in range(2):
        a(f"s_lshl_b32 s57, s{S_DH}, 2")
        a(f"s_add_u32 s57, s57, {2*e}")
        a("v_xor_b32 v16, s57, v6")
        a(f"v_lshl_add_u32 v{VRA[e]}, v16, 4, v7")
    a(f"s_mul_i32 s56, s{S_KH}, {NRES*4096}")
    a(f"v_add_u32 v22, s56, v{VRA[0]}")
    a(f"v_add_u32 v23, s56, v{VRA[1]}")
    WREG = 116
    for i in range(NRES):
        for dt in range(2):
            for hf in range(2):
                a(f"ds_read_b64_tr_b16 {vr(WREG + (i*2+dt)*4 + 2*hf, 2)}, v{22+dt} offset:{i*4096 + hf*512}")
        if i % 3 == 2:
            a("s_waitcnt lgkmcnt(4)")
    final_loads(a)
    a(f"s_lshl_b32 s56, s{S_KH}, 13")
    a("v_lshl_add_u32 v30, v2, 4, s56")
    a(f"v_add_u32 v31, {4*F2_SLOT}, v30")
    a(f"s_mul_i32 s56, s{S_KH}, {7*4096}")
    a(f"s_add_u32 s56, s56, {F2_LW}")
    a(f"v_add_u32 v24, s56, v{VRA[0]}")
    a(f"v_add_u32 v25, s56, v{VRA[1]}")
    a("s_waitcnt lgkmcnt(0)")
    stamp(a)
    a("s_barrier")
    a("s_barrier")
    ACC2 = 36
    def acc2(dt, st): return ACC2 + (dt*4 + st)*4
    FB = [68, 84]
    FA = [100, 108]
    def reads2(I, e, s):
        slot = I % F2_NSLOT
        i = 2*I + e
        vb, off = (30, slot*F2_SLOT) if slot < 4 else (31, (slot-4)*F2_SLOT)
        r = [f"ds_read_b128 {vr(FB[s]+4*st,4)}, v{vb} offset:{off + e*4096 + st*1024}" for st in range(4)]
        if i >= NRES:
            for dt in range(2):
                for hf in range(2):
                    r.append(f"ds_read_b64_tr_b16 {vr(FA[s]+4*dt+2*hf,2)}, v{24+dt} offset:{(i-NRES)*4096 + hf*512}")
        return r
    def part2(I, e, s, nxt, guard=False):
        i = 2*I + e
        a("s_waitcnt lgkmcnt(0)")
        lab = None
        if guard:
            lab = a.newlabel("Lg")
            a(f"s_cmp_eq_u32 s{S_KH}, 1")
            a(f"s_cbranch_scc1 {lab}")
        m = []
        for dt in range(2):
            areg = (WREG + (i*2+dt)*4) if i < NRES else (FA[s] + 4*dt)
            for st in range(4):
                c = "0" if i == 0 else vr(acc2(dt, st), 4)
                m.append(f"v_mfma_f32_16x16x32_bf16 {vr(acc2(dt,st),4)}, {vr(areg,4)}, {vr(FB[s]+4*st,4)}, {c}")
        interleave(a, m, spread(8, nxt, 0, 1 if len(nxt) <= 4 else 2))
        if lab: a.label(lab)
    NI = 11
    a("s_barrier")
    stamp(a)
    for x in reads2(0, 0, 0): a(x)
    for I in range(NI):
        part2(I, 0, 0, reads2(I, 1, 1))
        a("s_waitcnt lgkmcnt(0)")
        if I + 1 < NI:
            a("s_barrier")
            part2(I, 1, 1, reads2(I + 1, 0, 0))
        else:
            part2(I, 1, 1, [], guard=True)
    stamp(a)
    a.nop(8)
    a("s_barrier")
    a(f"s_mul_i32 s56, s{S_KH}, {64*F2_PP}")
    a(f"s_lshl_b32 s57, s{S_DH}, 7")
    a("s_add_u32 s56, s56, s57")
    a(f"v_mul_u32_u24 v6, {F2_PP}, v3")
    a("v_lshl_add_u32 v6, v4, 4, v6")
    a("v_add_u32 v6, s56, v6")
    for dt in range(2):
        for st in range(4):
            a(f"ds_write_b128 v6, {vr(acc2(dt,st),4)} offset:{st*16*F2_PP + dt*64}")
    a("s_branch Lfinal")
def path_Y(a):
    a.label("LY")
    asmlib.Stamps.n = 1
    S_Y = S_A
    a(f"s_sub_u32 s{S_Y}, s{S_W}, 4")
    a(f"s_cmp_lt_u32 s{S_Y}, 2")
    a("s_cselect_b32 s56, s48, s50")
    a("s_cselect_b32 s57, s49, s51")
    ptr_srd(a, R_W, 56, D*F*2)
    VQ = [84, 85, 86, 87]; VW = [88, 89, 90, 91, 92, 93]
    a("v_lshrrev_b32 v5, 3, v2")
    a("v_and_b32 v7, 7, v2")
    a(f"s_lshl_b32 s56, s{S_RB}, 17")
    a(f"s_lshl_b32 s57, s{S_Y}, 15")
    a("s_add_u32 s56, s56, s57")
    for e in range(4):
        a(f"v_add_u32 v6, {4*e}, v4")
        a("v_and_b32 v6, 7, v6")
        a("v_xor_b32 v6, v6, v7")
        a("v_lshlrev_b32 v6, 4, v6")
        a("v_lshl_add_u32 v6, v5, 10, v6")
        a(f"v_add_u32 v{VQ[e]}, s56, v6")
        if e: a(f"v_add_u32 v{VQ[e]}, {8192*e}, v{VQ[e]}")
    S_QD, S_WDD, S_J0 = 44, 45, 46
    a(f"s_lshl_b32 s{S_QD}, s{S_Y}, 12")
    a(f"s_add_u32 s{S_QD}, s{S_QD}, {F1_QBASE}")
    a(f"s_lshr_b32 s56, s{S_Y}, 1")
    a(f"s_mul_i32 s{S_WDD}, s56, 12288")
    a(f"s_and_b32 s56, s{S_Y}, 1")
    a("s_mul_i32 s56, s56, 6144")
    a(f"s_add_u32 s{S_WDD}, s{S_WDD}, s56")
    a(f"s_lshr_b32 s{S_J0}, s{S_RB}, 1")
    def dma_src(Jn):
        a(f"s_add_u32 s47, s{S_J0}, {Jn}")
        a("s_and_b32 s47, s47, 7")
        a("s_lshl_b32 s48, s47, 7")
        a(f"s_mul_i32 s49, s47, {64*2752}")
    def dma_q(Jn):
        slot = Jn % 3
        for e in range(4):
            a(f"s_add_u32 m0, s{S_QD}, {slot*F1_QSLOT + e*1024}")
            a.nop(1)
            a(f"buffer_load_dwordx4 v{VQ[e]}, s[{R_Q}:{R_Q+3}], s48 offen lds")
    def dma_w(Jn):
        slot = Jn % 3
        for e in range(6):
            a(f"s_add_u32 m0, s{S_WDD}, {slot*F1_WSLOT + e*1024}")
            a.nop(1)
            a(f"buffer_load_dwordx4 v{VW[e]}, s[{R_W}:{R_W+3}], s49 offen lds")
    def dma(Jn):
        dma_src(Jn); dma_q(Jn); dma_w(Jn)
    dma_src(0); dma_q(0)
    a(f"s_and_b32 s56, s{S_Y}, 1")
    a("s_mul_i32 s56, s56, 384")
    a(f"s_mul_i32 s57, s{S_SL}, 192")
    a("s_mov_b32 s58, 43691")
    a("s_movk_i32 s59, 2752")
    for e in range(6):
        a("v_add_u32 v6, s56, v2")
        if e: a(f"v_add_u32 v6, {64*e}, v6")
        a("v_mul_u32_u24 v7, s58, v6")
        a("v_lshrrev_b32 v7, 19, v7")
        a("v_mul_u32_u24 v8, 12, v7")
        a("v_sub_u32 v6, v6, v8")
        a("v_lshrrev_b32 v8, 2, v7")
        a("v_and_b32 v8, 2, v8")
        a("v_xor_b32 v6, v6, v8")
        a("v_lshlrev_b32 v6, 4, v6")
        a("v_mul_u32_u24 v7, s59, v7")
        a("v_add_u32 v6, v6, v7")
        a(f"v_add_u32 v{VW[e]}, s57, v6")
    dma_w(0)
    stamp(a)
    dma(1)
    a(f"s_load_dwordx2 s[56:57], s[0:1], {KA_H}")
    a(f"s_load_dwordx2 s[40:41], s[0:1], {KA_WD}")
    a(f"s_load_dwordx2 s[58:59], s[0:1], {KA_DD}")
    a("s_waitcnt lgkmcnt(0)")
    ptr_srd(a, R_H, 56, D*S*2)
    ptr_srd(a, R_WD, 40, F*D*2)
    a("s_lshl_b32 s56, s2, 2")
    a(f"s_load_dword s{S_DD}, s[58:59], s56")
    S_FA1, S_FA2, S_FCS = 60, 61, 62
    a("s_lshr_b32 s56, s2, 4")
    a("s_lshl_b32 s56, s56, 7")
    a("s_and_b32 s57, s2, 15")
    a("s_lshl_b32 s57, s57, 2")
    a("s_add_u32 s56, s56, s57")
    a(f"s_add_u32 s{S_FA1}, s56, {WS_FLAG + FL_AS*128}")
    a("s_and_b32 s56, s2, 7")
    a("s_lshl_b32 s56, s56, 7")
    a("s_lshr_b32 s57, s2, 3")
    a("s_lshl_b32 s57, s57, 2")
    a("s_add_u32 s56, s56, s57")
    a(f"s_add_u32 s{S_FA2}, s56, {WS_FLAG + FL_AK*128}")
    a(f"s_lshl_b32 s56, s{S_SL}, 7")
    a(f"s_lshl_b32 s57, s{S_RB}, 2")
    a("s_add_u32 s56, s56, s57")
    a(f"s_add_u32 s{S_FCS}, s56, {WS_FLAG + FL_CS*128}")
    VPA, VPT = 100, 101
    a("s_lshr_b32 s58, s2, 5")
    a("s_lshl_b32 s58, s58, 7")
    a(f"s_add_u32 s58, s58, {WS_FLAG + FL_AK*128}")
    a("v_and_b32 v6, 31, v2")
    a(f"v_lshl_add_u32 v{VPA}, v6, 2, s58")
    a(f"s_lshl_b32 s56, s{S_RB}, 7")
    a(f"s_add_u32 s56, s56, {WS_FLAG + FL_AS*128}")
    a(f"s_lshl_b32 s57, s{S_SL}, 7")
    a(f"s_add_u32 s57, s57, {WS_FLAG + FL_CS*128}")
    a("v_mov_b32 v6, s56")
    a("v_mov_b32 v7, s57")
    a("v_cmp_le_u32 vcc, 16, v2")
    a.nop(2)
    a("v_cndmask_b32 v6, v6, v7, vcc")
    a("v_lshl_add_u32 v6, v3, 2, v6")
    a("v_cmp_gt_u32 vcc, 32, v2")
    a.nop(2)
    a(f"v_cndmask_b32 v{VPA}, v{VPA}, v6, vcc")
    VWD = [102, 103]
    a("v_lshrrev_b32 v5, 3, v2")
    a("v_and_b32 v7, 7, v2")
    a("v_and_b32 v6, 2, v5")
    a("v_xor_b32 v6, v6, v7")
    a("v_xor_b32 v8, 4, v6")
    a("v_lshlrev_b32 v6, 4, v6")
    a("v_lshlrev_b32 v8, 4, v8")
    a(f"v_lshl_add_u32 v{VWD[0]}, v5, 10, v6")
    a(f"v_lshl_add_u32 v{VWD[1]}, v5, 10, v8")
    a(f"s_lshl_b32 s56, s{S_CB}, 7")
    a(f"v_add_u32 v{VWD[0]}, s56, v{VWD[0]}")
    a(f"v_add_u32 v{VWD[1]}, s56, v{VWD[1]}")
    VWDY = 107
    a(f"s_bitcmp1_b32 s{S_Y}, 0")
    a(f"v_mov_b32 v{VWDY}, v{VWD[0]}")
    lab = a.newlabel("Lyw")
    a(f"s_cbranch_scc0 {lab}")
    a(f"v_mov_b32 v{VWDY}, v{VWD[1]}")
    a.label(lab)
    tr_lane192(a, 6, 7, 8, 9)
    a(f"s_and_b32 s56, s{S_Y}, 1")
    a("s_mul_i32 s56, s56, 6")
    a(f"s_lshr_b32 s57, s{S_Y}, 1")
    a("s_mul_i32 s57, s57, 12288")
    a(f"s_and_b32 s58, s{S_RB}, 1")
    a(f"s_mul_i32 s58, s58, {32*192}")
    a("s_add_u32 s57, s57, s58")
    for t in range(3):
        a(f"s_add_u32 s59, s56, {2*t}")
        a("v_xor_b32 v8, s59, v7")
        a(f"v_lshl_add_u32 v{104+t}, v8, 4, v6")
        a(f"v_add_u32 v{104+t}, s57, v{104+t}")
    a("s_waitcnt vmcnt(10)")
    a("s_barrier")
    stamp(a)
    a(f"v_mov_b32 v8, {L_NON}")
    a("ds_read_b32 v9, v8")
    for t in range(3):
        for hf in range(2):
            a(f"ds_read_b64_tr_b16 {vr(12 + 4*t + 2*hf, 2)}, v{104+t} offset:{4*hf*192}")
    dma(2)
    for i in range(4): a(f"v_mov_b32 v{24+i}, 0x3f803f80")
    a("s_waitcnt lgkmcnt(0)")
    a(f"v_readfirstlane_b32 s{S_NONCE}, v9")
    for t in range(3):
        a(f"v_mfma_f32_16x16x32_bf16 {vr(28 + 4*t, 4)}, {vr(12+4*t,4)}, v[24:27], 0")
    a(f"s_lshl_b32 s56, s{S_SL}, 4")
    a(f"s_add_u32 s56, s56, s{S_RB}")
    a("s_mul_i32 s56, s56, 768")
    a(f"s_mul_i32 s57, s{S_Y}, 192")
    a("s_add_u32 s56, s56, s57")
    a(f"s_add_u32 s56, s56, {WS_CSP}")
    a("v_lshl_add_u32 v40, v4, 4, s56")
    a("s_waitcnt vmcnt(10)")
    a("s_barrier")
    a("s_mov_b32 s56, 0x00010001")
    a("s_mov_b32 exec_lo, s56")
    a("s_mov_b32 exec_hi, s56")
    for t in range(3):
        a(f"buffer_store_dwordx4 {vr(28+4*t,4)}, v40, s[{R_WS}:{R_WS+3}], 0 offen offset:{t*64} sc1")
    a("s_mov_b64 exec, -1")
    dma(3)
    VCH, VCXA, VCXS, VCHP = 108, 116, 124, 132
    VCO, VCP, VSTT = 134, 136, 152
    a("s_waitcnt vmcnt(10)")
    a("s_barrier")
    dma(4)
    a("s_waitcnt vmcnt(10)")
    a("s_barrier")
    dma(5)
    a("s_waitcnt vmcnt(10)")
    a("s_barrier")
    lab = a.newlabel("Lyp")
    a(f"s_cmp_lg_u32 s{S_Y}, 0")
    a(f"s_cbranch_scc1 {lab}")
    publish(a, 8, [S_FA1, S_FA2, S_FCS])
    a.label(lab)
    dma(6)
    a("s_waitcnt vmcnt(10)")
    a("s_barrier")
    dma(7)
    def wd_pref(rs):
        for r in rs:
            ks = r if r < NRES else 22 + (r - NRES)
            a(f"s_lshl_b32 s56, s{S_Y}, 13")
            a(f"s_add_u32 s56, s56, {ks*32768}")
            a(f"s_lshl_b32 s57, s{S_Y}, 10")
            a(f"s_add_u32 m0, s57, {r*4096}")
            a.nop(1)
            a(f"buffer_load_dwordx4 v{VWDY}, s[{R_WD}:{R_WD+3}], s56 offen lds")
    lab = a.newlabel("Lyq")
    a(f"s_cmp_lg_u32 s{S_Y}, 3")
    a(f"s_cbranch_scc1 {lab}")
    poll(a, VPA, VPT)
    a.label(lab)
    a("s_waitcnt vmcnt(10)")
    a("s_barrier")
    a("v_subrev_u32 v9, 256, v0")
    lab = a.newlabel("Lys")
    a(f"s_cmp_ge_u32 s{S_Y}, 2")
    a(f"s_cbranch_scc1 {lab}")
    a(f"s_lshl_b32 s56, s{S_RB}, 10")
    a(f"s_add_u32 s56, s56, {WS_STATS}")
    a("v_lshl_add_u32 v8, v9, 3, s56")
    a(f"buffer_load_dwordx2 {vr(VSTT,2)}, v8, s[{R_WS}:{R_WS+3}], 0 offen sc1")
    a.label(lab)
    lab = a.newlabel("Lyc")
    a(f"s_cmp_ge_u32 s{S_Y}, 3")
    a(f"s_cbranch_scc1 {lab}")
    a(f"s_mul_i32 s56, s{S_SL}, {16*768}")
    a(f"s_add_u32 s56, s56, {WS_CSP}")
    a("v_lshl_add_u32 v8, v9, 2, s56")
    for r in range(16):
        if r and r % 4 == 0:
            a("v_add_u32 v8, 3072, v8")
        a(f"buffer_load_dword v{VCP+r}, v8, s[{R_WS}:{R_WS+3}], 0 offen offset:{(r%4)*768} sc1")
    a.label(lab)
    a("v_lshrrev_b32 v6, 7, v9")
    a("v_and_b32 v7, 127, v9")
    a("s_lshl_b32 s56, s2, 13")
    a("v_lshlrev_b32 v6, 12, v6")
    a("v_lshl_add_u32 v6, v7, 4, v6")
    a(f"v_add_u32 v{VCO}, s56, v6")
    a(f"v_subrev_u32 v{VCO+1}, 4, v{VCO}")
    a(f"s_mov_b32 s56, {WS_KVT}")
    for e in range(2):
        a(f"buffer_load_dwordx4 {vr(VCH+4*e,4)}, v{VCO}, s[{R_H}:{R_H+3}], 0 offen offset:{e*2048}")
        a(f"buffer_load_dword v{VCHP+e}, v{VCO+1}, s[{R_H}:{R_H+3}], 0 offen offset:{e*2048}")
        a(f"buffer_load_dwordx4 {vr(VCXA+4*e,4)}, v{VCO}, s[{R_WS}:{R_WS+3}], s56 offen offset:{e*2048} sc1")
        a(f"buffer_load_dwordx4 {vr(VCXS+4*e,4)}, v{VCO+1}, s[{R_WS}:{R_WS+3}], s56 offen offset:{e*2048} sc1")
    wd_pref([12, 13, 14, 15, 16, 17, 26, 27, 28, 29])
    a("s_waitcnt vmcnt(10)")
    a("s_barrier")
    stamp(a)
    wd_pref([0, 1, 2, 3, 4, 5, 18, 19, 20, 21])
    lab = a.newlabel("Lys")
    a(f"s_cmp_ge_u32 s{S_Y}, 2")
    a(f"s_cbranch_scc1 {lab}")
    a("v_lshlrev_b32 v8, 3, v9")
    a(f"v_add_u32 v8, {L_ST}, v8")
    a(f"ds_write_b64 v8, {vr(VSTT,2)}")
    a.label(lab)
    lab = a.newlabel("Lyc")
    a(f"s_cmp_ge_u32 s{S_Y}, 3")
    a(f"s_cbranch_scc1 {lab}")
    for r in range(1, 16):
        a(f"v_add_f32 v{VCP}, v{VCP}, v{VCP+r}")
    a("v_lshlrev_b32 v8, 2, v9")
    a(f"v_add_u32 v8, {L_CS}, v8")
    a(f"ds_write_b32 v8, v{VCP}")
    a.label(lab)
    a("v_lshrrev_b32 v6, 7, v9")
    a("v_and_b32 v7, 127, v9")
    a(f"v_mul_u32_u24 v8, {C_CH}, v6")
    a(f"v_add_u32 v10, {L_CONV}, v8")
    a("v_lshl_add_u32 v8, v7, 4, v10")
    for i in range(4): a(f"v_mov_b32 v{12+i}, 0")
    a("v_cmp_eq_u32 vcc, 0, v7")
    a.nop(2)
    a(f"v_cndmask_b32 v{VCHP}, v{VCHP}, v12, vcc")
    for e in range(2):
        h = VCH + 4*e
        a(f"ds_write_b128 v8, {vr(h,4)} offset:{C_HO + 64 + e*2048}")
        a(f"v_alignbit_b32 v16, v{h}, v{VCHP+e}, 16")
        a(f"v_alignbit_b32 v17, v{h+1}, v{h}, 16")
        a(f"v_alignbit_b32 v18, v{h+2}, v{h+1}, 16")
        a(f"v_alignbit_b32 v19, v{h+3}, v{h+2}, 16")
        a(f"ds_write_b128 v8, v[16:19] offset:{C_HEV + 64 + e*2048}")
        a(f"ds_write_b128 v8, {vr(VCXA+4*e,4)} offset:{C_XO + e*2048}")
        a(f"ds_write_b128 v8, {vr(VCXS+4*e,4)} offset:{C_XE + e*2048}")
        a.nop(1)
    a("v_cmp_gt_u32 vcc, 4, v7")
    a("s_and_saveexec_b64 s[42:43], vcc")
    a(f"ds_write_b128 v8, v[12:15] offset:{C_HEV}")
    a(f"ds_write_b128 v8, v[12:15] offset:{C_HO}")
    a("s_mov_b64 exec, s[42:43]")
    a("v_cmp_gt_u32 vcc, 32, v7")
    a("s_and_saveexec_b64 s[42:43], vcc")
    a(f"ds_write_b128 v8, v[12:15] offset:{C_XO + 4096}")
    a("s_mov_b64 exec, s[42:43]")
    a("v_cmp_gt_u32 vcc, 32, v7")
    a("v_cmp_lt_u32 s[56:57], 0, v7")
    a("s_and_b64 vcc, vcc, s[56:57]")
    a("s_and_saveexec_b64 s[42:43], vcc")
    a(f"ds_write_b128 v8, v[12:15] offset:{C_XE + 4096}")
    a("s_mov_b64 exec, s[42:43]")
    a("v_cmp_eq_u32 vcc, 127, v7")
    a("s_and_saveexec_b64 s[42:43], vcc")
    a(f"v_mov_b32 v12, v{VCXA+7}")
    a(f"ds_write_b128 v10, v[12:15] offset:{C_XE + 4096}")
    a("s_mov_b64 exec, s[42:43]")
    a("s_waitcnt lgkmcnt(0)")
    a("s_barrier")
    stamp(a)
    wd_pref([6, 7, 8, 9, 10, 11, 22, 23, 24, 25])
    S_CH, S_HALF, S_CB0 = 44, 45, 46
    a(f"s_lshr_b32 s{S_CH}, s{S_Y}, 1")
    a(f"s_and_b32 s{S_HALF}, s{S_Y}, 1")
    a(f"s_mul_i32 s{S_CB0}, s{S_CH}, {C_CH}")
    a(f"s_add_u32 s{S_CB0}, s{S_CB0}, {L_CONV}")
    a("v_lshrrev_b32 v45, 1, v3")
    a("v_lshlrev_b32 v46, 3, v45")
    a("v_lshl_add_u32 v46, v4, 4, v46")
    a("v_and_b32 v47, 1, v3")
    a(f"v_mul_u32_u24 v48, {C_HO - C_HEV}, v47")
    a("v_add_u32 v46, v46, v48")
    a(f"s_lshl_b32 s56, s{S_HALF}, 8")
    a(f"s_add_u32 s56, s56, s{S_CB0}")
    a(f"s_add_u32 s57, s56, {C_HEV + 8}")
    a("v_add_u32 v46, s57, v46")
    a("v_lshlrev_b32 v49, 4, v4")
    a("v_lshlrev_b32 v50, 6, v45")
    a("v_sub_u32 v49, v49, v50")
    a(f"v_mul_u32_u24 v48, {(C_XE + 456) - (C_XO + 448)}, v47")
    a("v_sub_u32 v49, v49, v48")
    a(f"s_add_u32 s57, s56, {C_XE + 456}")
    a("v_add_u32 v49, s57, v49")
    VA, VB = 46, 49
    CACC = 52
    CFS = [108, 172]
    def fa(s, i): return CFS[s] + 4*i
    def fb(s, i): return CFS[s] + 32 + 4*i
    def creads(c, s):
        r = []
        for m in range(8):
            for hf in range(2):
                r.append(f"ds_read_b64 {vr(fa(s,m)+2*hf,2)}, v{VA} offset:{m*512 + c*64 + hf*8}")
            for hf in range(2):
                r.append(f"ds_read_b64 {vr(fb(s,m)+2*hf,2)}, v{VB} offset:{(7-m)*512 + c*64 + hf*8}")
        return r
    pairs = []
    for m in range(8):
        ps = [(x, m) for x in range(m)] + [(m, x) for x in range(m)] + [(m, m)]
        pairs += [p for p in ps if p[0] + p[1] <= 7]
    touched = set()
    for x in creads(0, 0): a(x)
    for c in range(4):
        s = c & 1
        nxt = creads(c + 1, s ^ 1) if c < 3 else []
        a("s_waitcnt lgkmcnt(0)")
        m = []
        for (a1, u) in pairs:
            Tt = a1 + u
            cc = vr(CACC + 4*Tt, 4) if Tt in touched else "0"
            touched.add(Tt)
            m.append(f"v_mfma_f32_16x16x32_bf16 {vr(CACC+4*Tt,4)}, {vr(fa(s,a1),4)}, {vr(fb(s,u),4)}, {cc}")
        interleave(a, m, spread(36, nxt, 0, 1))
    stamp(a)
    a.nop(8)
    a("v_lshlrev_b32 v5, 4, v2")
    a(f"s_lshl_b32 s56, s{S_Y}, 2")
    a(f"s_add_u32 s56, s56, {L_CF}")
    a("v_mov_b32 v11, s56")
    a("s_xor_b32 s56, s56, 4")
    a("v_mov_b32 v12, s56")
    def lds_wait(val):
        lab = a.newlabel("Lcf"); out = a.newlabel("Lcf")
        a("s_mov_b32 s40, 0")
        a.label(lab)
        a("ds_read_b32 v14, v12")
        a("s_add_u32 s40, s40, 1")
        a("s_waitcnt lgkmcnt(0)")
        a("v_readfirstlane_b32 s41, v14")
        a(f"s_cmp_ge_u32 s40, {POLL_MAX*10}")
        a(f"s_cbranch_scc1 {out}")
        a(f"s_cmp_lt_u32 s41, {val}")
        a(f"s_cbranch_scc1 {lab}")
        a.label(out)
    a("v_mov_b32 v13, 1")
    a("ds_write_b32 v11, v13")
    lds_wait(1)
    a(f"s_lshl_b32 s56, s{S_HALF}, 12")
    a(f"s_add_u32 s56, s56, s{S_CB0}")
    a("v_add_u32 v6, s56, v5")
    a(f"s_xor_b32 s57, s{S_HALF}, 1")
    a("s_lshl_b32 s57, s57, 12")
    a(f"s_add_u32 s57, s57, s{S_CB0}")
    a("v_add_u32 v7, s57, v5")
    lk0 = a.newlabel("Lr"); lk1 = a.newlabel("Lr")
    a(f"s_cmp_eq_u32 s{S_HALF}, 0")
    a(f"s_cbranch_scc0 {lk0}")
    for t in range(4):
        a(f"ds_write_b128 v6, {vr(CACC+16+4*t,4)} offset:{t*1024}")
    a(f"s_branch {lk1}")
    a.label(lk0)
    for t in range(4):
        a(f"ds_write_b128 v6, {vr(CACC+4*t,4)} offset:{t*1024}")
    a.nop(2)
    for i in range(16):
        a(f"v_mov_b32 v{CACC+i}, v{CACC+16+i}")
    a.label(lk1)
    a("s_waitcnt lgkmcnt(0)")
    a("v_mov_b32 v13, 2")
    a("ds_write_b32 v11, v13")
    lds_wait(2)
    R = 84
    for t in range(4):
        a(f"ds_read_b128 {vr(R+4*t,4)}, v7 offset:{t*1024}")
    a("v_lshlrev_b32 v8, 4, v4")
    a("v_lshl_add_u32 v8, v47, 2, v8")
    a("v_lshl_add_u32 v8, v45, 6, v8")
    a(f"s_lshl_b32 s56, s{S_HALF}, 11")
    a(f"s_sub_u32 s56, s{S_CB0}, s56")
    a(f"s_add_u32 s56, s56, {C_XO + 2042*2 - 3*512}")
    a("v_sub_u32 v9, s56, v8")
    K = 32
    for t in range(4):
        a(f"ds_read_b32 v{K+2*t}, v9 offset:{(3-t)*512}")
        a(f"ds_read_b32 v{K+2*t+1}, v9 offset:{(3-t)*512+8}")
    a(f"s_lshl_b32 s57, s{S_DD}, 16")
    a(f"s_and_b32 s58, s{S_DD}, 0xffff0000")
    a(f"s_cmp_eq_u32 s{S_CH}, 0")
    a("s_cselect_b32 s57, s57, s58")
    a(f"s_lshl_b32 s56, s{S_HALF}, 11")
    a(f"s_add_u32 s56, s56, s{S_CB0}")
    a(f"s_add_u32 s56, s56, {C_XE}")
    a("v_add_u32 v10, s56, v8")
    a("s_waitcnt lgkmcnt(0)")
    for t in range(4):
        for j in range(4):
            a(f"v_add_f32 v{CACC+4*t+j}, v{CACC+4*t+j}, v{R+4*t+j}")
    for t in range(4):
        y = CACC + 4*t
        k4, k0 = K + 2*t, K + 2*t + 1
        a(f"v_cvt_pk_bf16_f32 v12, v{y}, v{y+1}")
        a(f"v_cvt_pk_bf16_f32 v13, v{y+2}, v{y+3}")
        a(f"v_and_b32 v16, 0xffff0000, v{k0}")
        a(f"v_lshlrev_b32 v17, 16, v{k0}")
        a(f"v_and_b32 v18, 0xffff0000, v{k4}")
        a(f"v_lshlrev_b32 v19, 16, v{k4}")
        a(f"v_lshlrev_b32 v20, 16, v12")
        a(f"v_and_b32 v21, 0xffff0000, v12")
        a(f"v_lshlrev_b32 v22, 16, v13")
        a(f"v_and_b32 v23, 0xffff0000, v13")
        for j in range(4):
            a(f"v_fmac_f32 v{20+j}, s57, v{16+j}")
        a(f"v_cvt_pk_bf16_f32 v12, v20, v21")
        a(f"v_cvt_pk_bf16_f32 v13, v22, v23")
        a(f"ds_write_b32 v10, v12 offset:{t*512}")
        a(f"ds_write_b32 v10, v13 offset:{t*512+8}")
        a.nop(1)
    a("s_waitcnt lgkmcnt(0)")
    a("v_add_u32 v11, s56, v5")
    a("ds_read_b128 v[24:27], v11")
    a("ds_read_b128 v[28:31], v11 offset:1024")
    a("s_lshl_b32 s56, s2, 1")
    a(f"s_add_u32 s56, s56, s{S_CH}")
    a("s_lshl_b32 s56, s56, 12")
    a(f"s_lshl_b32 s57, s{S_HALF}, 11")
    a("s_add_u32 s56, s56, s57")
    a(f"s_add_u32 s56, s56, {WS_YT}")
    a("v_add_u32 v11, s56, v5")
    a("s_waitcnt lgkmcnt(1)")
    a(f"buffer_store_dwordx4 v[24:27], v11, s[{R_WS}:{R_WS+3}], 0 offen sc1")
    a("s_waitcnt lgkmcnt(0)")
    a(f"buffer_store_dwordx4 v[28:31], v11, s[{R_WS}:{R_WS+3}], 0 offen offset:1024 sc1")
    stamp(a)
    a(f"s_lshr_b32 s47, s{S_Y}, 1")
    a(f"s_and_b32 s48, s{S_Y}, 1")
    a("s_mul_i32 s50, s47, 22")
    a("s_add_u32 s50, s50, s48")
    a("s_lshl_b32 s51, s47, 13")
    a("s_lshl_b32 s52, s48, 12")
    a("s_add_u32 s51, s51, s52")
    a(f"s_mul_i32 s53, s{S_RB2}, 43")
    a("s_add_u32 s53, s53, s50")
    a("s_lshl_b32 s53, s53, 12")
    a(f"s_add_u32 s53, s53, {WS_HF}")
    a("v_lshlrev_b32 v17, 4, v2")
    a(f"s_lshl_b32 s56, s{S_RB2}, 8")
    a(f"s_add_u32 s56, s56, {WS_FLAG + FL_H*128}")
    a("v_cmp_gt_u32 vcc, 30, v2")
    a("v_mov_b32 v6, 0")
    a.nop(1)
    a("v_cndmask_b32 v6, v6, v2, vcc")
    a("v_lshl_add_u32 v18, v6, 2, s56")
    a("s_waitcnt vmcnt(0)")
    a("s_barrier")
    a("s_lshr_b32 s56, s2, 5")
    a("s_lshl_b32 s56, s56, 9")
    a("s_and_b32 s57, s2, 31")
    a("s_lshl_b32 s57, s57, 4")
    a("s_add_u32 s56, s56, s57")
    a(f"s_lshl_b32 s57, s{S_Y}, 2")
    a("s_add_u32 s56, s56, s57")
    a(f"s_add_u32 s56, s56, {WS_FLAG + FL_C2*128}")
    publish(a, 8, [56])
    final_loads(a)
    a("s_barrier")
    lp = a.newlabel("Lyh"); lj = a.newlabel("Lyh")
    a(f"s_cmp_eq_u32 s{S_Y}, 3")
    a(f"s_cbranch_scc1 {lp}")
    a(f"s_mov_b32 s54, s{S_Y}")
    for i in range(5):
        skip = a.newlabel("Lyk")
        a("s_cmp_ge_u32 s54, 14")
        a(f"s_cbranch_scc1 {skip}")
        a("s_add_u32 s55, s54, 15")
        a("s_add_u32 s56, s54, 30")
        a("s_cmp_ge_u32 s54, 7")
        a("s_cselect_b32 s55, s56, s55")
        a("s_lshl_b32 s55, s55, 15")
        a("s_lshl_b32 s56, s54, 12")
        a(f"s_add_u32 s56, s56, {F2_LW}")
        for e in range(4):
            a(f"s_add_u32 m0, s56, {e*1024}")
            a(f"s_add_u32 s57, s55, {e*8192}")
            a(f"buffer_load_dwordx4 v{VWD[e&1]}, s[{R_WD}:{R_WD+3}], s57 offen lds")
        a.label(skip)
        a("s_add_u32 s54, s54, 3")
    a(f"s_branch {lj}")
    a.label(lp)
    poll(a, 18, 7)
    a.label(lj)
    stamp(a)
    a("s_barrier")
    stamp(a)
    def dma2(I):
        slot = I % F2_NSLOT
        for st in range(4):
            a(f"s_add_u32 m0, s51, {slot*F2_SLOT + st*1024}")
            a(f"s_add_u32 s56, s53, {I*8192 + st*1024}")
            a(f"buffer_load_dwordx4 v17, s[{R_WS}:{R_WS+3}], s56 offen sc1 lds")
    for I in range(F2_NSLOT): dma2(I)
    a(f"s_waitcnt vmcnt({4*(F2_NSLOT-1)})")
    a("s_barrier")
    for I in range(10):
        ngr = min(I + F2_NSLOT - 1, 10) - (I + 1)
        if I == 5:
            a(f"s_lshl_b32 s56, s{S_CB}, 9")
            a(f"s_add_u32 s56, s56, {WS_FLAG + FL_C2*128}")
            a("v_lshl_add_u32 v6, v2, 3, s56")
            lab = a.newlabel("Lpc"); out = a.newlabel("Lpc")
            a("s_mov_b32 s40, 0")
            a.label(lab)
            a(f"buffer_load_dwordx2 v[8:9], v6, s[{R_WS}:{R_WS+3}], 0 offen sc1")
            a("s_add_u32 s40, s40, 1")
            a("s_waitcnt vmcnt(0)")
            a(f"v_cmp_ne_u32 vcc, s{S_NONCE}, v8")
            a(f"v_cmp_ne_u32 s[56:57], s{S_NONCE}, v9")
            a("s_or_b64 vcc, vcc, s[56:57]")
            a(f"s_cmp_ge_u32 s40, {POLL_MAX}")
            a(f"s_cbranch_scc1 {out}")
            a(f"s_cbranch_vccnz {lab}")
            a.label(out)
            a("v_lshrrev_b32 v5, 3, v2")
            a("v_and_b32 v7, 7, v2")
            for e in range(2):
                a("v_and_b32 v6, 2, v5")
                if e: a("v_or_b32 v6, 4, v6")
                a("v_xor_b32 v6, v6, v7")
                a("v_lshlrev_b32 v6, 4, v6")
                a("v_lshl_add_u32 v6, v5, 12, v6")
                a(f"s_lshl_b32 s56, s{S_CB}, 18")
                a(f"s_lshl_b32 s57, s{S_Y}, 16")
                a("s_add_u32 s56, s56, s57")
                a(f"s_lshl_b32 s57, s{S_RB2}, 7")
                a("s_add_u32 s56, s56, s57")
                a(f"s_add_u32 s56, s56, {WS_YT + e*32768}")
                a(f"s_lshl_b32 s57, s{S_Y}, 11")
                a(f"s_add_u32 m0, s57, {F2_YT + e*1024}")
                a.nop(1)
                a(f"buffer_load_dwordx4 v6, s[{R_WS}:{R_WS+3}], s56 offen sc1 lds")
            a("s_waitcnt vmcnt(2)")
        else:
            a(f"s_waitcnt vmcnt({4*ngr})")
        a("s_barrier")
        if I + F2_NSLOT < 11: dma2(I + F2_NSLOT)
    a("s_barrier")

def final(a):
    a.label("Lfinal")
    a("s_waitcnt lgkmcnt(0) vmcnt(0)")
    a("s_barrier")
    a(f"s_and_b32 s56, s{S_W}, 3")
    a(f"s_lshr_b32 s59, s{S_W}, 2")
    a(f"s_mul_i32 s57, s56, {16*F2_PP}")
    a("s_lshl_b32 s58, s59, 7")
    a("s_add_u32 s57, s57, s58")
    a(f"v_mul_u32_u24 v6, {F2_PP}, v3")
    a("v_lshl_add_u32 v6, v4, 5, v6")
    a("v_add_u32 v6, s57, v6")
    a("ds_read_b128 v[40:43], v6")
    a("ds_read_b128 v[44:47], v6 offset:16")
    a(f"ds_read_b128 v[48:51], v6 offset:{64*F2_PP}")
    a(f"ds_read_b128 v[52:55], v6 offset:{64*F2_PP+16}")
    a("v_lshrrev_b32 v7, 2, v2")
    a("v_and_b32 v7, 3, v7")
    a("v_and_b32 v16, 2, v7")
    a("v_and_b32 v17, 1, v4")
    a("v_lshl_or_b32 v16, v17, 2, v16")
    a("v_and_b32 v17, 3, v2")
    a("v_lshrrev_b32 v18, 1, v17")
    a("s_lshl_b32 s57, s56, 1")
    a("v_add_u32 v18, s57, v18")
    a("v_xor_b32 v18, v18, v16")
    a("v_lshlrev_b32 v18, 4, v18")
    a("v_and_b32 v17, 1, v17")
    a("v_lshl_add_u32 v18, v17, 3, v18")
    a("v_lshl_add_u32 v7, v4, 3, v7")
    a("v_lshl_add_u32 v18, v7, 7, v18")
    a("s_lshl_b32 s57, s59, 12")
    a(f"s_add_u32 s57, s57, {F2_YT}")
    a("v_add_u32 v18, s57, v18")
    a("ds_read_b64_tr_b16 v[56:57], v18")
    a("ds_read_b64_tr_b16 v[58:59], v18 offset:512")
    a(f"s_load_dwordx2 s[40:41], s[0:1], {KA_OUT}")
    a("s_mov_b32 s56, 0xbfb8aa3b")
    a("s_waitcnt lgkmcnt(0)")
    ptr_srd(a, R_OUT, 40, S*D*2)
    for j in range(8): a(f"v_add_f32 v{40+j}, v{40+j}, v{48+j}")
    for j in range(8): a(f"v_mul_f32 v{48+j}, s56, v{40+j}")
    for j in range(8): a(f"v_exp_f32 v{48+j}, v{48+j}")
    for m in range(4):
        a(f"v_lshlrev_b32 v{60+2*m}, 16, v{VFQ+m}")
        a(f"v_and_b32 v{61+2*m}, 0xffff0000, v{VFQ+m}")
        a(f"v_lshlrev_b32 v{68+2*m}, 16, v{56+m}")
        a(f"v_and_b32 v{69+2*m}, 0xffff0000, v{56+m}")
    for j in range(8): a(f"v_add_f32 v{48+j}, 1.0, v{48+j}")
    for j in range(8): a(f"v_rcp_f32 v{48+j}, v{48+j}")
    for j in range(8): a(f"v_sub_f32 v{76+j}, v{60+j}, v{VFS}")
    for j in range(8): a(f"v_mul_f32 v{76+j}, v{76+j}, v{VFS+1}")
    for j in range(8): a(f"v_mul_f32 v{40+j}, v{40+j}, v{48+j}")
    for j in range(8): a(f"v_mul_f32 v{76+j}, v{76+j}, v{68+j}")
    for j in range(8): a(f"v_fmac_f32 v{60+j}, v{76+j}, v{40+j}")
    for m in range(4):
        a(f"v_cvt_pk_bf16_f32 v{8+m}, v{60+2*m}, v{61+2*m}")
    a(f"buffer_store_dwordx4 v[8:11], v{VFO}, s[{R_OUT}:{R_OUT+3}], 0 offen")
    asmlib.Stamps.n = 15
    stamp(a)
    if asmlib.PROF:
        a("s_waitcnt lgkmcnt(0)")
        a("s_lshl_b32 s60, s2, 3")
        a(f"s_add_u32 s60, s60, s{S_W}")
        a("s_lshl_b32 s60, s60, 7")
        a(f"s_add_u32 s60, s60, {WS_PROF}")
        a("v_mov_b32 v20, s60")
        for i in range(16):
            a(f"v_mov_b32 v21, s{STAMP_BASE+2*i}")
            a(f"buffer_store_dword v21, v20, s[{R_WS}:{R_WS+3}], 0 offen offset:{4*i}")
            a.nop(2)
    a.label("Ldone")
    a("s_endpgm")

def gen():
    a = A()
    stamp_reset()
    prologue(a)
    path_X(a)
    path_Y(a)
    final(a)
    return a

def build(prof=False):
    asmlib.PROF = prof
    a = gen()
    hdr = open("recurrent_scan__ssm_conv_h3__glu_gated_geglu__prompt.s.ref").read().split("; Override")[0]
    s = hdr + f"; @launch grid=(256,1,1) block=(512,1,1) lds={LDS_TOTAL}\n"
    s += '.amdgcn_target "amdgcn-amd-amdhsa--gfx950"\n.text\n'
    s += kernel_header(NAME) + a.text()
    s += '.section .rodata,"a"\n.p2align 6\n' + kernel_desc(NAME, 256, 100)
    return s

if __name__ == "__main__":
    prof = len(sys.argv) > 2 and sys.argv[2] == "prof"
    open(sys.argv[1], "w").write(build(prof))
```

```python
import sys, struct
import asmlib
from asmlib import *

NAME = "recurrent_scan__ssm_conv_h3__glu_gated_geglu__prompt_kernel"
S, D, F = 2048, 512, 1376
KA_Q, KA_K, KA_V, KA_SK, KA_H, KA_DD, KA_BX, KA_WG, KA_WU, KA_WD, KA_OUT, KA_DBG, KA_WS = [8*i for i in range(13)]

WS_KVT   = 0x000000
WS_STATS = 0x200000
WS_CSP   = 0x210000
WS_FLAG  = 0x300000
FL_AS, FL_AK, FL_CS, FL_C, FL_H = 0, 16, 24, 40, 48
WS_HF    = 0x400000
WS_YT    = 0xA00000
WS_SIZE  = 0x10000000

def f2u(x): return struct.unpack("<I", struct.pack("<f", x))[0]

S_W = 3
R_Q, R_WS, R_W, R_K, R_V, R_SK, R_DBG = 4, 8, 12, 16, 20, 24, 28
R_H, R_WD, R_OUT = R_K, R_V, R_SK
S_RB, S_SL, S_NONCE, S_RB2, S_CB, S_JJ = 32, 33, 36, 37, 38, 39
S_A, S_B = 34, 35
S_DD = 63

F1_WSLOT = 24576
F1_QBASE = 73728
F1_QSLOT = 16384
L_CS = 122880
L_ST = L_CS + 768
L_NON = L_ST + 1024
L_CF = L_NON + 16
L_CONV = L_CF + 48
C_HEV, C_HO, C_XO, C_XE = 0, 4224, 8448, 13056
C_CH = 17664
LDS_TOTAL = 163840
assert L_CONV + 2*C_CH <= LDS_TOTAL
L_RED = 0
F2_SLOT = 16384
F2_NSLOT = 6
F2_LW = 0
F2_HB = 14*4096
F2_YT = F2_HB + 6*16384
F2_P = 0
F2_PP = 272
NRES = 15

POLL_MAX = 20000

def wave_sum16(a, v):
    a(f"v_add_f32_dpp v{v}, v{v}, v{v} quad_perm:[1,0,3,2] row_mask:0xf bank_mask:0xf")
    a.nop(2)
    a(f"v_add_f32_dpp v{v}, v{v}, v{v} quad_perm:[2,3,0,1] row_mask:0xf bank_mask:0xf")
    a.nop(2)
    a(f"v_add_f32_dpp v{v}, v{v}, v{v} row_half_mirror row_mask:0xf bank_mask:0xf")
    a.nop(2)
    a(f"v_add_f32_dpp v{v}, v{v}, v{v} row_mirror row_mask:0xf bank_mask:0xf")

def wave_sum64(a, v, s0):
    a.nop(2)
    wave_sum16(a, v)
    a.nop(1)
    for i in range(4):
        a(f"v_readlane_b32 s{s0+i}, v{v}, {16*i}")
    a.nop(2)
    a(f"v_mov_b32 v{v}, s{s0}")
    for i in range(1, 4):
        a(f"v_add_f32 v{v}, s{s0+i}, v{v}")

def ptr_srd(a, dst, lo, nbytes):
    srd(a, dst, lo, lo + 1, nbytes)

def get_nonce(a, vt):
    lab = a.newlabel("Lnon"); out = a.newlabel("Lnon")
    a(f"s_cmp_lg_u32 s{S_NONCE}, 0")
    a(f"s_cbranch_scc1 {out}")
    a("s_mov_b32 s40, 0")
    a(f"v_mov_b32 v{vt}, 0")
    a.label(lab)
    a(f"buffer_load_dword v{vt+1}, v{vt}, s[{R_DBG}:{R_DBG+3}], 0 offen sc1")
    a("s_add_u32 s40, s40, 1")
    a("s_waitcnt vmcnt(0)")
    a(f"v_readfirstlane_b32 s{S_NONCE}, v{vt+1}")
    a(f"s_cmp_ge_u32 s40, {POLL_MAX}")
    a(f"s_cbranch_scc1 {out}")
    a(f"s_cmp_eq_u32 s{S_NONCE}, 0")
    a(f"s_cbranch_scc1 {lab}")
    a.label(out)

def publish(a, vt, addr_sgprs):
    a(f"v_mov_b32 v{vt+1}, s{S_NONCE}")
    a("s_mov_b64 exec, 1")
    for s in addr_sgprs:
        a(f"v_mov_b32 v{vt}, s{s}")
        a(f"buffer_store_dword v{vt+1}, v{vt}, s[{R_WS}:{R_WS+3}], 0 offen sc1")
        a.nop(1)
    a("s_mov_b64 exec, -1")

def poll(a, vaddr, vt, first_issued=False):
    lab = a.newlabel("Lpoll"); out = a.newlabel("Lpoll"); chk = a.newlabel("Lpoll")
    a("s_mov_b32 s40, 0")
    if first_issued:
        a(f"s_branch {chk}")
    a.label(lab)
    a(f"buffer_load_dword v{vt}, v{vaddr}, s[{R_WS}:{R_WS+3}], 0 offen sc1")
    a.label(chk)
    a("s_add_u32 s40, s40, 1")
    a("s_waitcnt vmcnt(0)")
    a(f"v_cmp_ne_u32 vcc, s{S_NONCE}, v{vt}")
    a(f"s_cmp_ge_u32 s40, {POLL_MAX}")
    a(f"s_cbranch_scc1 {out}")
    a(f"s_cbranch_vccnz {lab}")
    a.label(out)

def interleave(a, m, fills):
    for i, x in enumerate(m):
        a(x)
        for y in fills[i]: a(y)

def spread(n_m, items, start=0, per=1):
    f = [[] for _ in range(n_m)]
    i = start
    for k, x in enumerate(items):
        slot = min(start + k // per, n_m - 1)
        f[slot].append(x)
    return f

VFQ, VFS, VFO = 236, 240, 242
FL_C2 = 112

def prologue(a):
    a("s_cmp_ge_u32 s2, 256")
    a("s_cbranch_scc1 Ldone")
    stamp(a)
    a("s_load_dwordx4 s[40:43], s[0:1], 0")
    a("s_load_dwordx4 s[44:47], s[0:1], 16")
    a(f"s_load_dwordx4 s[48:51], s[0:1], {KA_WG}")
    a(f"s_load_dwordx4 s[52:55], s[0:1], {KA_DBG}")
    a("v_lshrrev_b32 v1, 6, v0")
    a("v_and_b32 v2, 63, v0")
    a(f"v_readfirstlane_b32 s{S_W}, v1")
    a("v_and_b32 v3, 15, v2")
    a("v_lshrrev_b32 v4, 4, v2")
    a("s_and_b32 s56, s2, 7")
    a("s_lshr_b32 s57, s2, 3")
    a("s_and_b32 s58, s56, 1")
    a("s_lshl_b32 s58, s58, 3")
    a("s_and_b32 s59, s57, 7")
    a(f"s_add_u32 s{S_RB}, s58, s59")
    a("s_lshr_b32 s58, s56, 1")
    a("s_lshl_b32 s58, s58, 2")
    a("s_lshr_b32 s59, s57, 3")
    a(f"s_add_u32 s{S_SL}, s58, s59")
    a("s_lshr_b32 s58, s56, 1")
    a("s_lshl_b32 s58, s58, 3")
    a("s_and_b32 s59, s57, 7")
    a(f"s_add_u32 s{S_RB2}, s58, s59")
    a("s_and_b32 s58, s56, 1")
    a("s_lshl_b32 s58, s58, 2")
    a("s_lshr_b32 s59, s57, 3")
    a(f"s_add_u32 s{S_CB}, s58, s59")
    a(f"s_mov_b32 s{S_NONCE}, 0")
    a("s_waitcnt lgkmcnt(0)")
    ptr_srd(a, R_Q, 40, S*D*2)
    ptr_srd(a, R_WS, 54, WS_SIZE)
    ptr_srd(a, R_DBG, 52, 256)
    a(f"s_cmp_ge_u32 s{S_W}, 4")
    a("s_cbranch_scc1 LY")

def final_loads(a):
    a(f"s_and_b32 s56, s{S_W}, 3")
    a(f"s_lshl_b32 s57, s{S_RB2}, 6")
    a("s_lshl_b32 s58, s56, 4")
    a("s_add_u32 s57, s57, s58")
    a("v_add_u32 v5, s57, v3")
    a(f"s_lshl_b32 s58, s{S_CB}, 7")
    a(f"s_lshr_b32 s59, s{S_W}, 2")
    a("s_lshl_b32 s59, s59, 6")
    a("s_add_u32 s58, s58, s59")
    a("v_lshlrev_b32 v6, 10, v5")
    a("v_lshl_add_u32 v6, v4, 4, v6")
    a(f"v_add_u32 v{VFO}, s58, v6")
    a(f"buffer_load_dwordx4 {vr(VFQ,4)}, v{VFO}, s[{R_Q}:{R_Q+3}], 0 offen")
    a("v_lshlrev_b32 v6, 3, v5")
    a(f"v_add_u32 v6, {WS_STATS}, v6")
    a(f"buffer_load_dwordx2 {vr(VFS,2)}, v6, s[{R_WS}:{R_WS+3}], 0 offen sc1")

def tr_lane128(a, vdst, vf, t0, t1):
    a(f"v_lshrrev_b32 v{t0}, 2, v2")
    a(f"v_and_b32 v{t0}, 3, v{t0}")
    a(f"v_lshl_add_u32 v{vdst}, v4, 3, v{t0}")
    a(f"v_lshlrev_b32 v{vdst}, 7, v{vdst}")
    a(f"v_and_b32 v{t1}, 3, v2")
    a(f"v_and_b32 v{vf}, 1, v{t1}")
    a(f"v_lshl_add_u32 v{vdst}, v{vf}, 3, v{vdst}")
    a(f"v_lshrrev_b32 v{t1}, 1, v{t1}")
    a(f"v_lshl_add_u32 v{vdst}, v{t1}, 4, v{vdst}")
    a(f"v_and_b32 v{t0}, 2, v{t0}")
    a(f"v_and_b32 v{t1}, 1, v4")
    a(f"v_lshl_or_b32 v{vf}, v{t1}, 2, v{t0}")

def tr_lane192(a, vdst, v2g, t0, t1):
    a(f"v_lshrrev_b32 v{t0}, 2, v2")
    a(f"v_and_b32 v{t0}, 3, v{t0}")
    a(f"v_lshl_add_u32 v{t0}, v4, 3, v{t0}")
    a(f"v_mul_u32_u24 v{vdst}, 192, v{t0}")
    a(f"v_and_b32 v{t0}, 3, v2")
    a(f"v_and_b32 v{t1}, 1, v{t0}")
    a(f"v_lshl_add_u32 v{vdst}, v{t1}, 3, v{vdst}")
    a(f"v_lshrrev_b32 v{t0}, 1, v{t0}")
    a(f"v_lshl_add_u32 v{vdst}, v{t0}, 4, v{vdst}")
    a(f"v_and_b32 v{v2g}, 1, v4")
    a(f"v_lshlrev_b32 v{v2g}, 1, v{v2g}")

R_WDX = R_K
NPF = 0
def l2_prefetch(a):
    a("s_and_b32 s56, s2, 7")
    a("s_lshr_b32 s57, s2, 3")
    a("s_and_b32 s58, s56, 1")
    a("s_lshl_b32 s58, s58, 20")
    a("s_lshl_b32 s59, s57, 15")
    a("s_add_u32 s58, s58, s59")
    a(f"s_lshl_b32 s59, s{S_W}, 13")
    a("s_add_u32 s58, s58, s59")
    a("v_lshl_add_u32 v100, v2, 7, s58")
    a(f"buffer_load_dword v244, v100, s[{R_Q}:{R_Q+3}], 0 offen")
    a("s_mov_b32 s59, 10923")
    a("v_mul_u32_u24 v101, s59, v2")
    a("v_lshrrev_b32 v101, 16, v101")
    a("v_mul_u32_u24 v102, 6, v101")
    a("v_sub_u32 v102, v2, v102")
    a("s_lshl_b32 s58, s57, 4")
    a(f"s_lshl_b32 s59, s{S_W}, 2")
    a("s_add_u32 s58, s58, s59")
    a("v_add_u32 v101, s58, v101")
    a("s_movk_i32 s59, 2752")
    a("v_mul_u32_u24 v101, s59, v101")
    a("v_lshl_add_u32 v101, v102, 7, v101")
    a("s_lshr_b32 s58, s56, 1")
    a("s_mul_i32 s58, s58, 768")
    a("v_add_u32 v101, s58, v101")
    a("v_cmp_gt_u32 vcc, 24, v2")
    a("v_mov_b32 v102, 0x7ff00000")
    a.nop(1)
    a("v_cndmask_b32 v101, v102, v101, vcc")
    ptr_srd(a, 56, 48, D*F*2)
    a("buffer_load_dword v245, v101, s[56:59], 0 offen")
    ptr_srd(a, 56, 50, D*F*2)
    a("buffer_load_dword v246, v101, s[56:59], 0 offen")
    a(f"s_load_dwordx2 s[56:57], s[0:1], {KA_WD}")
    a(f"s_load_dwordx2 s[58:59], s[0:1], {KA_H}")
    a("s_lshr_b32 s40, s2, 3")
    a("s_mul_i32 s40, s40, 43")
    a(f"s_mul_i32 s41, s{S_W}, 11")
    a("s_add_u32 s40, s40, s41")
    a("v_lshrrev_b32 v103, 2, v2")
    a("v_add_u32 v103, s40, v103")
    a("v_lshlrev_b32 v103, 10, v103")
    a("v_and_b32 v104, 3, v2")
    a("v_lshl_add_u32 v103, v104, 7, v103")
    a("s_and_b32 s40, s2, 1")
    a("s_lshl_b32 s40, s40, 9")
    a("v_add_u32 v103, s40, v103")
    a("v_cmp_gt_u32 vcc, 44, v2")
    a("v_mov_b32 v104, 0x7ff00000")
    a("s_waitcnt lgkmcnt(0)")
    a("v_cndmask_b32 v103, v104, v103, vcc")
    a("s_mov_b32 s40, s56")
    a("s_mov_b32 s41, s57")
    a("s_mov_b32 s42, s58")
    a("s_mov_b32 s43, s59")
    ptr_srd(a, 56, 40, F*D*2)
    a("buffer_load_dword v247, v103, s[56:59], 0 offen")
    ptr_srd(a, 56, 42, D*S*2)
    a("s_lshl_b32 s40, s2, 13")
    a(f"s_lshl_b32 s41, s{S_W}, 11")
    a("s_add_u32 s40, s40, s41")
    a("v_lshl_add_u32 v105, v2, 7, s40")
    a("v_cmp_gt_u32 vcc, 16, v2")
    a("v_mov_b32 v104, 0x7ff00000")
    a.nop(1)
    a("v_cndmask_b32 v105, v104, v105, vcc")
    a("buffer_load_dword v248, v105, s[56:59], 0 offen")
    a(f"s_lshl_b32 s40, s{S_RB2}, 6")
    a(f"s_lshl_b32 s41, s{S_W}, 4")
    a("s_add_u32 s40, s40, s41")
    a("v_add_u32 v105, s40, v3")
    a("v_lshlrev_b32 v105, 10, v105")
    a(f"s_lshl_b32 s40, s{S_CB}, 7")
    a("v_add_u32 v105, s40, v105")
    a("v_cmp_gt_u32 vcc, 16, v2")
    a.nop(2)
    a("v_cndmask_b32 v105, v104, v105, vcc")
    a(f"buffer_load_dword v249, v105, s[{R_Q}:{R_Q+3}], 0 offen")

def path_X(a):
    ptr_srd(a, R_K, 42, S*D*2)
    ptr_srd(a, R_V, 44, S*D*2)
    ptr_srd(a, R_SK, 46, D*4*2)
    a("s_lshr_b32 s56, s2, 3")
    a("s_and_b32 s57, s2, 7")
    a("v_and_b32 v1, 7, v0")
    a("v_lshrrev_b32 v5, 3, v0")
    a("s_lshl_b32 s58, s56, 16")
    a("s_lshl_b32 s59, s57, 7")
    a("s_add_u32 s58, s58, s59")
    a("v_lshlrev_b32 v6, 11, v5")
    a("v_lshl_add_u32 v6, v1, 4, v6")
    a("v_add_u32 v6, s58, v6")
    for i in range(5):
        a(f"v_add_u32 v{44+i}, {(i-3)*1024 & 0xffffffff}, v6")
    for i in range(5):
        a(f"buffer_load_dwordx4 {vr(8+4*i,4)}, v{44+i}, s[{R_K}:{R_K+3}], 0 offen")
    a(f"buffer_load_dwordx4 v[28:31], v6, s[{R_V}:{R_V+3}], 0 offen")
    a(f"buffer_load_dwordx4 v[32:35], v6, s[{R_V}:{R_V+3}], 0 offen offset:1024")
    a("s_lshl_b32 s59, s57, 9")
    a("v_lshlrev_b32 v7, 6, v1")
    a("v_add_u32 v7, s59, v7")
    for i in range(4):
        a(f"buffer_load_dwordx4 {vr(52+4*i,4)}, v7, s[{R_SK}:{R_SK+3}], 0 offen offset:{16*i}")
    a("s_lshl_b32 s59, s2, 13")
    a(f"s_lshl_b32 s58, s{S_W}, 11")
    a("s_add_u32 s59, s59, s58")
    a("v_lshl_add_u32 v49, v2, 4, s59")
    a(f"buffer_load_dwordx4 v[36:39], v49, s[{R_Q}:{R_Q+3}], 0 offen")
    a(f"buffer_load_dwordx4 v[40:43], v49, s[{R_Q}:{R_Q+3}], 0 offen offset:1024")
    lab = a.newlabel("Lw0")
    a(f"s_or_b32 s56, s2, s{S_W}")
    a("s_cmp_lg_u32 s56, 0")
    a(f"s_cbranch_scc1 {lab}")
    a("s_memrealtime s[56:57]")
    a("s_waitcnt lgkmcnt(0)")
    a(f"s_or_b32 s{S_NONCE}, s56, 1")
    a("v_mov_b32 v50, 0")
    a(f"v_mov_b32 v51, s{S_NONCE}")
    a("s_mov_b64 exec, 1")
    a(f"buffer_store_dword v51, v50, s[{R_DBG}:{R_DBG+3}], 0 offen sc1")
    a("s_mov_b64 exec, -1")
    a.label(lab)
    S_WS2, S_WF = S_A, S_B
    a(f"s_and_b32 s{S_WS2}, s{S_W}, 1")
    a(f"s_lshr_b32 s{S_WF}, s{S_W}, 1")
    VRQ = [[212 + 2*s + ks for ks in range(2)] for s in range(3)]
    VRW = [[[218 + 6*s + 3*gu + t for t in range(3)] for gu in range(2)] for s in range(3)]
    a("v_lshrrev_b32 v6, 1, v3")
    a(f"s_lshl_b32 s56, s{S_WS2}, 13")
    a(f"s_add_u32 s56, s56, {F1_QBASE}")
    for ks in range(2):
        a(f"v_add_u32 v7, {4*ks}, v4")
        a("v_xor_b32 v7, v7, v6")
        a("v_lshlrev_b32 v7, 4, v7")
        a("v_lshl_add_u32 v7, v3, 7, v7")
        a(f"v_add_u32 v{VRQ[0][ks]}, s56, v7")
        for s in (1, 2):
            a(f"v_add_u32 v{VRQ[s][ks]}, {s*F1_QSLOT}, v{VRQ[0][ks]}")
    tr_lane192(a, 6, 7, 50, 51)
    a(f"s_mul_i32 s56, s{S_WF}, 6")
    for t in range(3):
        a(f"s_add_u32 s57, s56, {2*t}")
        a("v_xor_b32 v50, s57, v7")
        a(f"v_lshl_add_u32 v{VRW[0][0][t]}, v50, 4, v6")
        for s in range(3):
            for gu in range(2):
                if s == 0 and gu == 0: continue
                a(f"v_add_u32 v{VRW[s][gu][t]}, {s*F1_WSLOT + gu*12288}, v{VRW[0][0][t]}")
    ACC = 116
    FS = [8, 48]
    for i in range(96):
        a(f"v_mov_b32 v{ACC+i}, 0")
    a("v_lshrrev_b32 v88, 2, v5")
    a("v_sub_u32 v88, 7, v88")
    a("v_xor_b32 v88, v88, v1")
    a("v_lshlrev_b32 v88, 4, v88")
    a("v_and_b32 v89, 3, v5")
    a("v_lshlrev_b32 v89, 2, v89")
    a("v_sub_u32 v89, 12, v89")
    a("v_add_u32 v88, v88, v89")
    a("v_lshl_add_u32 v88, v1, 10, v88")
    a(f"v_add_u32 v88, {L_CONV}, v88")
    a("s_mov_b32 s40, 0x05040100")
    a("s_mov_b32 s41, 0x07060302")
    stamp(a)
    a(f"s_waitcnt vmcnt({2 + NPF})")
    stamp(a)
    for row in range(2):
        R = 90 + 8*row
        k3, k2, k1, k0 = 20 + 4*row, 16 + 4*row, 12 + 4*row, 8 + 4*row
        for m in range(4):
            for half in range(2):
                e = 2*m + half
                sel = "s40" if half == 0 else "s41"
                a(f"v_perm_b32 v{68+2*e}, v{k2+m}, v{k3+m}, {sel}")
                a(f"v_perm_b32 v{69+2*e}, v{k0+m}, v{k1+m}, {sel}")
        for e in range(8):
            a(f"v_dot2_f32_bf16 v{R+e}, v{68+2*e}, v{52+2*e}, 0")
        for e in range(8):
            a(f"v_dot2_f32_bf16 v{R+e}, v{69+2*e}, v{53+2*e}, v{R+e}")
        V = 28 + 4*row
        for m in range(4):
            a(f"v_lshlrev_b32 v{68+2*m}, 16, v{V+m}")
            a(f"v_and_b32 v{69+2*m}, 0xffff0000, v{V+m}")
        for e in range(8):
            a(f"v_mul_f32 v{R+e}, v{R+e}, v{68+e}")
    for e in range(8):
        a(f"v_cvt_pk_bf16_f32 v{68+e}, v{98+e}, v{90+e}")
    for e in range(8):
        a(f"ds_write_b32 v88, v{68+e} offset:{e*128}")
    a(f"s_waitcnt vmcnt({NPF})")
    a("v_mov_b32 v76, 0x3f803f80")
    for row in range(2):
        Q = 36 + 4*row
        a("v_mov_b32 v77, 0")
        for m in range(4):
            a(f"v_dot2_f32_bf16 v77, v{Q+m}, v76, v77")
        a.nop(3)
        wave_sum64(a, 77, 56)
        a("v_mul_f32 v77, 0x3b000000, v77")
        for m in range(4):
            a(f"v_lshlrev_b32 v{78+2*m}, 16, v{Q+m}")
            a(f"v_and_b32 v{79+2*m}, 0xffff0000, v{Q+m}")
        for e in range(8):
            a(f"v_sub_f32 v{78+e}, v{78+e}, v77")
        a("v_mul_f32 v86, v78, v78")
        for e in range(1, 8):
            a(f"v_fmac_f32 v86, v{78+e}, v{78+e}")
        wave_sum64(a, 86, 56)
        a(f"v_mov_b32 v{107+2*row}, 0x3727c5ac")
        a(f"v_fmac_f32 v{107+2*row}, 0x3b000000, v86")
        a(f"v_rsq_f32 v{107+2*row}, v{107+2*row}")
        a(f"v_mov_b32 v{106+2*row}, v77")
    a("s_lshl_b32 s59, s2, 6")
    a(f"s_lshl_b32 s58, s{S_W}, 4")
    a("s_add_u32 s59, s59, s58")
    a(f"s_add_u32 s59, s59, {WS_STATS}")
    a("v_mov_b32 v110, s59")
    a("s_mov_b64 exec, 1")
    a(f"buffer_store_dwordx4 v[106:109], v110, s[{R_WS}:{R_WS+3}], 0 offen sc1")
    a("s_mov_b64 exec, -1")
    lab = a.newlabel("Lnn")
    a(f"s_cmp_lg_u32 s{S_W}, 0")
    a(f"s_cbranch_scc1 {lab}")
    a(f"v_mov_b32 v111, {L_NON}")
    for i in range(4): a(f"v_mov_b32 v{112+i}, 0")
    a("ds_write_b128 v111, v[112:115] offset:16")
    a("ds_write_b128 v111, v[112:115] offset:32")
    a("ds_write_b128 v111, v[112:115] offset:48")
    a("v_mov_b32 v111, 0")
    a(f"buffer_load_dword v243, v111, s[{R_DBG}:{R_DBG+3}], 0 offen sc1")
    a.label(lab)
    a("s_waitcnt lgkmcnt(0)")
    stamp(a)
    a("s_barrier")
    stamp(a)
    a("v_lshrrev_b32 v5, 3, v2")
    a("v_and_b32 v1, 7, v2")
    a(f"s_lshl_b32 s56, s{S_W}, 4")
    a("v_add_u32 v5, s56, v5")
    for e in range(2):
        a(f"v_add_u32 v6, {8*e}, v5")
        a("v_lshrrev_b32 v7, 3, v6")
        a("v_xor_b32 v7, v7, v1")
        a("v_lshlrev_b32 v7, 4, v7")
        a("v_lshl_add_u32 v7, v6, 7, v7")
        a(f"v_add_u32 v7, {L_CONV}, v7")
        a(f"ds_read_b128 {vr(88+4*e,4)}, v7")
    def acc(st, t, gu): return ACC + ((st*3 + t)*2 + gu)*4
    def fq(s, st): return FS[s] + 4*st
    def fw(s, gu, t): return FS[s] + 16 + (gu*3 + t)*4
    def reads(slot, ks, s):
        r = []
        for t in range(3):
            for gu in range(2):
                for hf in range(2):
                    r.append(f"ds_read_b64_tr_b16 {vr(fw(s, gu, t) + 2*hf, 2)}, v{VRW[slot][gu][t]} offset:{(32*ks + 4*hf)*192}")
        q = [f"ds_read_b128 {vr(fq(s, st), 4)}, v{VRQ[slot][ks]} offset:{st*2048}" for st in range(4)]
        return q + r
    for x in reads(0, 0, 0): a(x)
    a("s_lshr_b32 s56, s2, 3")
    a("s_and_b32 s57, s2, 7")
    a("s_lshl_b32 s59, s57, 18")
    a("s_lshl_b32 s58, s56, 7")
    a("s_sub_u32 s59, s59, s58")
    a(f"s_add_u32 s59, s59, {WS_KVT + 1984*2}")
    a("v_lshlrev_b32 v96, 12, v5")
    a("v_lshl_add_u32 v96, v1, 4, v96")
    a("v_add_u32 v96, s59, v96")
    a("v_add_u32 v97, 32768, v96")
    a("s_waitcnt lgkmcnt(0)")
    a(f"buffer_store_dwordx4 v[88:91], v96, s[{R_WS}:{R_WS+3}], 0 offen sc1")
    a(f"buffer_store_dwordx4 v[92:95], v97, s[{R_WS}:{R_WS+3}], 0 offen sc1")
    a(f"s_load_dwordx2 s[56:57], s[0:1], {KA_WD}")
    a(f"s_load_dwordx2 s[58:59], s[0:1], {KA_H}")
    a("s_lshr_b32 s40, s2, 3")
    a("s_mul_i32 s40, s40, 43")
    a(f"s_mul_i32 s41, s{S_W}, 11")
    a("s_add_u32 s40, s40, s41")
    a("v_lshrrev_b32 v244, 2, v2")
    a("v_add_u32 v244, s40, v244")
    a("v_lshlrev_b32 v244, 10, v244")
    a("v_and_b32 v245, 3, v2")
    a("v_lshl_add_u32 v244, v245, 7, v244")
    a("s_and_b32 s40, s2, 1")
    a("s_lshl_b32 s40, s40, 9")
    a("v_add_u32 v244, s40, v244")
    a("v_cmp_gt_u32 vcc, 44, v2")
    a("v_mov_b32 v246, 0x7ff00000")
    a("s_lshl_b32 s40, s2, 13")
    a(f"s_lshl_b32 s41, s{S_W}, 11")
    a("s_add_u32 s40, s40, s41")
    a("v_cndmask_b32 v244, v246, v244, vcc")
    a("v_lshl_add_u32 v245, v2, 7, s40")
    a("v_cmp_gt_u32 vcc, 16, v2")
    a("s_waitcnt lgkmcnt(0)")
    a.nop(1)
    a("v_cndmask_b32 v245, v246, v245, vcc")
    ptr_srd(a, R_WDX, 56, F*D*2)
    ptr_srd(a, R_V, 58, D*S*2)
    def mfmas(s):
        m = []
        for t in range(3):
            for gu in range(2):
                for st in range(4):
                    m.append(f"v_mfma_f32_16x16x32_bf16 {vr(acc(st,t,gu),4)}, {vr(fw(s,gu,t),4)}, {vr(fq(s,st),4)}, {vr(acc(st,t,gu),4)}")
        return m
    def part(s_cur, nxt):
        a("s_waitcnt lgkmcnt(0)")
        interleave(a, mfmas(s_cur), spread(24, nxt, 0, 1))
    a(f"s_mov_b32 s{S_JJ}, 0")
    a.label("Lx_f1_loop")
    for u in range(3):
        part(0, reads(u, 1, 1))
        a("s_waitcnt lgkmcnt(0)")
        if u == 1:
            a("s_waitcnt vmcnt(0)")
            lab = a.newlabel("Lxn")
            a(f"s_or_b32 s56, s{S_W}, s{S_JJ}")
            a("s_cmp_lg_u32 s56, 0")
            a(f"s_cbranch_scc1 {lab}")
            a(f"v_mov_b32 v88, {L_NON}")
            a(f"s_cmp_lg_u32 s{S_NONCE}, 0")
            a(f"v_mov_b32 v89, s{S_NONCE}")
            l2 = a.newlabel("Lxn")
            a(f"s_cbranch_scc1 {l2}")
            a("v_mov_b32 v89, v243")
            a.label(l2)
            a("ds_write_b32 v88, v89")
            a("s_waitcnt lgkmcnt(0)")
            a.label(lab)
            lab = a.newlabel("Lxp")
            a(f"s_cmp_lg_u32 s{S_JJ}, 1")
            a(f"s_cbranch_scc1 {lab}")
            a(f"buffer_load_dword v247, v244, s[{R_WDX}:{R_WDX+3}], 0 offen")
            a(f"buffer_load_dword v248, v245, s[{R_V}:{R_V+3}], 0 offen")
            a.label(lab)
        a("s_barrier")
        part(1, reads((u + 1) % 3, 0, 0))
        if u == 1:
            a(f"s_cmp_eq_u32 s{S_JJ}, 2")
            a("s_cbranch_scc1 Lx_f1_done")
    a(f"s_add_u32 s{S_JJ}, s{S_JJ}, 1")
    a("s_branch Lx_f1_loop")
    a.label("Lx_f1_done")
    a("s_waitcnt lgkmcnt(0)")
    stamp(a)
    CSD, STR = 8, 32
    a("s_setprio 3")
    a(f"v_mov_b32 v64, {L_NON}")
    a("ds_read_b32 v65, v64")
    a(f"s_mul_i32 s56, s{S_WF}, 192")
    a(f"s_add_u32 s56, s56, {L_CS}")
    a("v_lshl_add_u32 v6, v4, 4, s56")
    for gu in range(2):
        for t in range(3):
            a(f"ds_read_b128 {vr(CSD + (gu*3+t)*4, 4)}, v6 offset:{gu*384 + t*64}")
    a(f"s_lshl_b32 s56, s{S_WS2}, 9")
    a(f"s_add_u32 s56, s56, {L_ST}")
    a("v_lshl_add_u32 v6, v3, 3, s56")
    for st in range(4):
        a(f"ds_read_b64 {vr(STR+2*st,2)}, v6 offset:{st*128}")
    c1 = 2.0 * (2.0 / 3.141592653589793) ** 0.5 * 1.4426950408889634
    c2 = c1 * 0.044715
    a(f"v_mov_b32 v40, 0x{f2u(-c1):08x}")
    a(f"v_mov_b32 v41, 0x{f2u(-c2):08x}")
    a(f"s_lshl_b32 s56, s{S_RB}, 1")
    a(f"s_add_u32 s56, s56, s{S_WS2}")
    a("s_mov_b32 s58, s56")
    a("s_mul_i32 s56, s56, 43")
    a(f"s_mul_i32 s57, s{S_SL}, 3")
    a("s_add_u32 s56, s56, s57")
    a("s_lshl_b32 s56, s56, 12")
    a(f"s_add_u32 s56, s56, {WS_HF}")
    a("v_and_b32 v42, 1, v4")
    a("v_lshlrev_b32 v42, 10, v42")
    a("v_lshrrev_b32 v43, 1, v4")
    a("v_lshl_add_u32 v42, v43, 8, v42")
    a("v_lshl_add_u32 v42, v3, 4, v42")
    a("v_add_u32 v42, s56, v42")
    S_FH = 60
    a("s_lshl_b32 s58, s58, 8")
    a(f"s_lshl_b32 s57, s{S_SL}, 1")
    a(f"s_add_u32 s57, s57, s{S_WF}")
    a("s_lshl_b32 s57, s57, 2")
    a("s_add_u32 s58, s58, s57")
    a(f"s_add_u32 s{S_FH}, s58, {WS_FLAG + FL_H*128}")
    a("s_waitcnt lgkmcnt(0)")
    a(f"v_readfirstlane_b32 s{S_NONCE}, v65")
    T = 44
    for st in range(4):
        a(f"v_rcp_f32 v{64+st}, v{STR+2*st+1}")
        a(f"v_sub_f32 v{STR+2*st}, 0, v{STR+2*st}")
    for t in range(3):
        a(f"s_mul_i32 s56, s{S_WF}, 3")
        a(f"s_add_u32 s56, s56, {t}")
        a("s_lshr_b32 s57, s56, 1")
        a("s_and_b32 s56, s56, 1")
        a("s_lshl_b32 s56, s56, 9")
        a("s_lshl_b32 s59, s57, 12")
        a("s_add_u32 s56, s56, s59")
        a(f"s_mul_i32 s59, s{S_SL}, 3")
        a("s_add_u32 s59, s59, s57")
        a("s_cmp_lt_u32 s59, 43")
        a("s_cselect_b32 s56, s56, 0x7ff00000")
        for p in range(2):
            O = 48 + 4*((t*2 + p) % 4)
            for sti in range(2):
                st = 2*p + sti
                nm, rs, istd = STR + 2*st, STR + 2*st + 1, 64 + st
                g0, u0 = acc(st, t, 0), acc(st, t, 1)
                cg, cu = CSD + t*4, CSD + (3 + t)*4
                for j in range(4): a(f"v_fmac_f32 v{g0+j}, v{nm}, v{cg+j}")
                for j in range(4): a(f"v_fmac_f32 v{u0+j}, v{nm}, v{cu+j}")
                for j in range(4): a(f"v_mul_f32 v{g0+j}, v{rs}, v{g0+j}")
                for j in range(4): a(f"v_mul_f32 v{T+j}, v{g0+j}, v{g0+j}")
                for j in range(4): a(f"v_fma_f32 v{T+j}, v{T+j}, v41, v40")
                for j in range(4): a(f"v_mul_f32 v{T+j}, v{T+j}, v{g0+j}")
                for j in range(4): a(f"v_exp_f32 v{T+j}, v{T+j}")
                for j in range(4): a(f"v_mul_f32 v{u0+j}, v{u0+j}, v{g0+j}")
                for j in range(4): a(f"v_fma_f32 v{T+j}, v{T+j}, v{istd}, v{istd}")
                for j in range(4): a(f"v_rcp_f32 v{T+j}, v{T+j}")
                a.nop(1)
                for j in range(4): a(f"v_mul_f32 v{u0+j}, v{u0+j}, v{T+j}")
                a(f"v_cvt_pk_bf16_f32 v{O+2*sti}, v{u0}, v{u0+1}")
                a(f"v_cvt_pk_bf16_f32 v{O+2*sti+1}, v{u0+2}, v{u0+3}")
            a.nop(2)
            a(f"v_permlane16_swap_b32 v{O}, v{O+2}")
            a(f"v_permlane16_swap_b32 v{O+1}, v{O+3}")
            a(f"buffer_store_dwordx4 {vr(O,4)}, v42, s[{R_WS}:{R_WS+3}], s56 offen offset:{p*2048} sc1")
    stamp(a)
    a("s_waitcnt vmcnt(0)")
    publish(a, 68, [S_FH])
    stamp(a)
    a("s_setprio 0")
    a("s_barrier")
    S_DH, S_KH = S_A, S_B
    a(f"s_and_b32 s{S_DH}, s{S_W}, 1")
    a(f"s_lshr_b32 s{S_KH}, s{S_W}, 1")
    tr_lane128(a, 7, 6, 16, 19)
    VRA = [20, 21]
    for e in range(2):
        a(f"s_lshl_b32 s57, s{S_DH}, 2")
        a(f"s_add_u32 s57, s57, {2*e}")
        a("v_xor_b32 v16, s57, v6")
        a(f"v_lshl_add_u32 v{VRA[e]}, v16, 4, v7")
    a(f"s_mul_i32 s56, s{S_KH}, {NRES*4096}")
    a(f"v_add_u32 v22, s56, v{VRA[0]}")
    a(f"v_add_u32 v23, s56, v{VRA[1]}")
    WREG = 116
    for i in range(NRES):
        for dt in range(2):
            for hf in range(2):
                a(f"ds_read_b64_tr_b16 {vr(WREG + (i*2+dt)*4 + 2*hf, 2)}, v{22+dt} offset:{i*4096 + hf*512}")
        if i % 3 == 2:
            a("s_waitcnt lgkmcnt(4)")
    a("v_lshrrev_b32 v5, 3, v2")
    a("v_and_b32 v7, 7, v2")
    a("v_and_b32 v6, 2, v5")
    a(f"s_and_b32 s56, s{S_W}, 1")
    a("s_lshl_b32 s56, s56, 2")
    a("v_or_b32 v6, s56, v6")
    a("v_xor_b32 v6, v6, v7")
    a("v_lshlrev_b32 v6, 4, v6")
    a("v_lshl_add_u32 v26, v5, 10, v6")
    a(f"s_lshl_b32 s56, s{S_CB}, 7")
    a(f"s_lshl_b32 s57, s{S_W}, 13")
    a("s_add_u32 s56, s56, s57")
    a("v_add_u32 v26, s56, v26")
    a(f"s_lshr_b32 s47, s{S_W}, 1")
    a(f"s_and_b32 s48, s{S_W}, 1")
    a("s_mul_i32 s50, s47, 22")
    a("s_add_u32 s50, s50, s48")
    a("s_lshl_b32 s51, s47, 13")
    a("s_lshl_b32 s52, s48, 12")
    a("s_add_u32 s51, s51, s52")
    a(f"s_add_u32 s51, s51, {F2_HB}")
    a(f"s_mul_i32 s53, s{S_RB2}, 43")
    a("s_add_u32 s53, s53, s50")
    a("s_lshl_b32 s53, s53, 12")
    a(f"s_add_u32 s53, s53, {WS_HF}")
    a("v_lshlrev_b32 v27, 4, v2")
    a(f"s_lshl_b32 s56, s{S_RB2}, 8")
    a(f"s_add_u32 s56, s56, {WS_FLAG + FL_H*128}")
    a("v_cmp_gt_u32 vcc, 30, v2")
    a("v_mov_b32 v6, 0")
    a.nop(1)
    a("v_cndmask_b32 v6, v6, v2, vcc")
    a("v_lshl_add_u32 v28, v6, 2, s56")
    a(f"s_lshl_b32 s56, s{S_KH}, 13")
    a(f"s_add_u32 s56, s56, {F2_HB}")
    a("v_lshl_add_u32 v30, v2, 4, s56")
    a(f"v_add_u32 v31, {3*F2_SLOT}, v30")
    a(f"s_mul_i32 s56, s{S_KH}, {7*4096}")
    a(f"s_add_u32 s56, s56, {F2_LW}")
    a(f"v_add_u32 v24, s56, v{VRA[0]}")
    a(f"v_add_u32 v25, s56, v{VRA[1]}")
    a(f"buffer_load_dword v29, v28, s[{R_WS}:{R_WS+3}], 0 offen sc1")
    a("s_waitcnt lgkmcnt(0)")
    a(f"s_lshl_b32 s56, s{S_W}, 2")
    a(f"s_add_u32 s56, s56, {L_CF + 16}")
    a("v_mov_b32 v8, s56")
    a("v_mov_b32 v9, 1")
    a("ds_write_b32 v8, v9")
    a(f"v_mov_b32 v8, {L_CF + 16}")
    lab = a.newlabel("Lxs"); out = a.newlabel("Lxs")
    a("s_mov_b32 s40, 0")
    a.label(lab)
    a("ds_read_b128 v[12:15], v8")
    a("s_add_u32 s40, s40, 1")
    a("s_waitcnt lgkmcnt(0)")
    a("v_and_b32 v12, v12, v13")
    a("v_and_b32 v14, v14, v15")
    a("v_and_b32 v12, v12, v14")
    a.nop(1)
    a("v_readfirstlane_b32 s41, v12")
    a(f"s_cmp_ge_u32 s40, {POLL_MAX*10}")
    a(f"s_cbranch_scc1 {out}")
    a("s_cmp_eq_u32 s41, 0")
    a(f"s_cbranch_scc1 {lab}")
    a.label(out)
    stamp(a)
    a("s_waitcnt vmcnt(0)")
    lab = a.newlabel("Lxh")
    a(f"v_cmp_ne_u32 vcc, s{S_NONCE}, v29")
    a(f"s_cbranch_vccz {lab}")
    poll(a, 28, 29)
    a.label(lab)
    stamp(a)
    for I in range(4):
        for st in range(4):
            a(f"s_add_u32 m0, s51, {I*F2_SLOT + st*1024}")
            a(f"s_add_u32 s56, s53, {I*8192 + st*1024}")
            a(f"buffer_load_dwordx4 v27, s[{R_WS}:{R_WS+3}], s56 offen lds")
    for q in range(14):
        kh, m = q // 7, q % 7
        ks = 22*kh + NRES + m
        a(f"s_lshl_b32 s57, s{S_W}, 10")
        a(f"s_add_u32 m0, s57, {F2_LW + q*4096}")
        a(f"s_mov_b32 s56, {ks*32768}")
        a(f"buffer_load_dwordx4 v26, s[{R_WDX}:{R_WDX+3}], s56 offen lds")
    a(f"s_and_b32 s56, s{S_CB}, 3")
    a("s_mul_i32 s56, s56, 344")
    a(f"s_mul_i32 s57, s{S_W}, 86")
    a("s_add_u32 s56, s56, s57")
    a("s_lshl_b32 s56, s56, 7")
    a(f"s_mul_i32 s57, s{S_RB2}, {43*4096}")
    a("s_add_u32 s56, s56, s57")
    a(f"s_add_u32 s56, s56, {WS_HF}")
    a("v_lshl_add_u32 v32, v2, 7, s56")
    a("v_cmp_gt_u32 vcc, 43, v2")
    a("v_mov_b32 v33, 0x7ff00000")
    a.nop(1)
    a("v_cndmask_b32 v32, v33, v32, vcc")
    a(f"buffer_load_dword v34, v32, s[{R_WS}:{R_WS+3}], 0 offen")
    a(f"buffer_load_dword v35, v32, s[{R_WS}:{R_WS+3}], 0 offen offset:{0}") if False else None
    a(f"v_add_u32 v33, {43*128}, v32")
    a(f"buffer_load_dword v35, v33, s[{R_WS}:{R_WS+3}], 0 offen")
    final_loads(a)
    ACC2 = 36
    def acc2(dt, st): return ACC2 + (dt*4 + st)*4
    FB = [68, 84, 100]
    def reads2(p):
        I, e = p // 2, p % 2
        if p > 21: return []
        slot = I % F2_NSLOT
        s = p % 3
        vb, off = (30, slot*F2_SLOT) if slot < 3 else (31, (slot-3)*F2_SLOT)
        r = [f"ds_read_b128 {vr(FB[s]+4*st,4)}, v{vb} offset:{off + e*4096 + st*1024}" for st in range(4)]
        if p >= NRES:
            for dt in range(2):
                for hf in range(2):
                    r.append(f"ds_read_b64_tr_b16 {vr(FA2[p % 3]+4*dt+2*hf,2)}, v{24+dt} offset:{(p-NRES)*4096 + hf*512}")
        return r
    FA2 = [8, 244, 16]
    NI = 11
    a("s_waitcnt vmcnt(26)")
    a("s_barrier")
    stamp(a)
    for x in reads2(0): a(x)
    for x in reads2(1): a(x)
    prev_n = len(reads2(1))
    for I in range(NI):
        if 1 <= I <= 7:
            if I <= 2: a(f"s_waitcnt vmcnt({4*(2-I) + 18})")
            if I == 6: a("s_waitcnt vmcnt(0)")
            a("s_barrier")
        for e in range(2):
            p = 2*I + e
            nxt = reads2(p + 2)
            a(f"s_waitcnt lgkmcnt({prev_n})")
            lab = None
            if p == 21:
                lab = a.newlabel("Lg")
                a(f"s_cmp_eq_u32 s{S_KH}, 1")
                a(f"s_cbranch_scc1 {lab}")
            m = []
            for dt in range(2):
                areg = (WREG + (p*2+dt)*4) if p < NRES else (FA2[p % 3] + 4*dt)
                for st in range(4):
                    c = "0" if p == 0 else vr(acc2(dt, st), 4)
                    m.append(f"v_mfma_f32_16x16x32_bf16 {vr(acc2(dt,st),4)}, {vr(areg,4)}, {vr(FB[p % 3]+4*st,4)}, {c}")
            interleave(a, m, spread(8, nxt, 0, 1))
            if lab: a.label(lab)
            prev_n = len(nxt)
    stamp(a)
    a.nop(8)
    a("s_barrier")
    a(f"s_mul_i32 s56, s{S_KH}, {64*F2_PP}")
    a(f"s_lshl_b32 s57, s{S_DH}, 7")
    a("s_add_u32 s56, s56, s57")
    a(f"v_mul_u32_u24 v6, {F2_PP}, v3")
    a("v_lshl_add_u32 v6, v4, 4, v6")
    a("v_add_u32 v6, s56, v6")
    for dt in range(2):
        for st in range(4):
            a(f"ds_write_b128 v6, {vr(acc2(dt,st),4)} offset:{st*16*F2_PP + dt*64}")
    a("s_branch Lfinal")
def cap(a, fn):
    t = A(); t.uid = a.uid
    fn(t)
    a.uid = t.uid
    return [x.strip() for x in t.l]

def lds_flag_wait(a, vaddr, vt, val, b128=False):
    lab = a.newlabel("Lcf"); out = a.newlabel("Lcf")
    a("s_mov_b32 s40, 0")
    a.label(lab)
    if b128:
        a(f"ds_read_b128 {vr(vt,4)}, v{vaddr}")
    else:
        a(f"ds_read_b32 v{vt}, v{vaddr}")
    a("s_add_u32 s40, s40, 1")
    a("s_waitcnt lgkmcnt(0)")
    if b128:
        a(f"v_min_u32 v{vt}, v{vt}, v{vt+1}")
        a(f"v_min_u32 v{vt+2}, v{vt+2}, v{vt+3}")
        a(f"v_min_u32 v{vt}, v{vt}, v{vt+2}")
        a.nop(1)
    a(f"v_readfirstlane_b32 s41, v{vt}")
    a(f"s_cmp_ge_u32 s40, {POLL_MAX*10}")
    a(f"s_cbranch_scc1 {out}")
    a(f"s_cmp_lt_u32 s41, {val}")
    a(f"s_cbranch_scc1 {lab}")
    a.label(out)

def path_Y(a):
    a.label("LY")
    asmlib.Stamps.n = 1
    S_Y = S_A
    a(f"s_sub_u32 s{S_Y}, s{S_W}, 4")
    a(f"s_cmp_lt_u32 s{S_Y}, 2")
    a("s_cselect_b32 s56, s48, s50")
    a("s_cselect_b32 s57, s49, s51")
    ptr_srd(a, R_W, 56, D*F*2)
    VQ = [84, 85, 86, 87]; VW = [88, 89, 90, 91, 92, 93]
    a("v_lshrrev_b32 v5, 3, v2")
    a("v_and_b32 v7, 7, v2")
    a(f"s_lshl_b32 s56, s{S_RB}, 17")
    a(f"s_lshl_b32 s57, s{S_Y}, 15")
    a("s_add_u32 s56, s56, s57")
    S_QD, S_WDD, S_J0 = 44, 45, 46
    a(f"s_lshl_b32 s{S_QD}, s{S_Y}, 12")
    a(f"s_add_u32 s{S_QD}, s{S_QD}, {F1_QBASE}")
    a(f"s_lshr_b32 s{S_J0}, s{S_RB}, 1")
    def dma_src(Jn):
        a(f"s_add_u32 s47, s{S_J0}, {Jn}")
        a("s_and_b32 s47, s47, 7")
        a("s_lshl_b32 s48, s47, 7")
        a(f"s_mul_i32 s49, s47, {64*2752}")
    class Fill:
        def __init__(s, lines, n):
            s.l = list(lines); s.per = (len(s.l) + n - 1) // n if n else 0
        def step(s):
            for x in s.l[:s.per]: a(x)
            s.l = s.l[s.per:]
        def flush(s):
            for x in s.l: a(x)
            s.l = []
    def dma_q(Jn, f=None):
        slot = Jn % 3
        for e in range(4):
            a(f"s_add_u32 m0, s{S_QD}, {slot*F1_QSLOT + e*1024}")
            a.nop(1)
            a(f"buffer_load_dwordx4 v{VQ[e]}, s[{R_Q}:{R_Q+3}], s48 offen lds")
            if f: f.step()
    def dma_w(Jn, f=None):
        slot = Jn % 3
        for e in range(6):
            a(f"s_add_u32 m0, s{S_WDD}, {slot*F1_WSLOT + e*1024}")
            a.nop(1)
            a(f"buffer_load_dwordx4 v{VW[e]}, s[{R_W}:{R_W+3}], s49 offen lds")
            if f: f.step()
    def dma(Jn, fill=()):
        f = Fill(fill, 10)
        dma_src(Jn); dma_q(Jn, f); dma_w(Jn, f)
        f.flush()
    dma_src(0)
    for e in range(4):
        a(f"v_add_u32 v6, {4*e}, v4")
        a("v_and_b32 v6, 7, v6")
        a("v_xor_b32 v6, v6, v7")
        a("v_lshlrev_b32 v6, 4, v6")
        a("v_lshl_add_u32 v6, v5, 10, v6")
        a(f"v_add_u32 v{VQ[e]}, s56, v6")
        if e: a(f"v_add_u32 v{VQ[e]}, {8192*e}, v{VQ[e]}")
        a(f"s_add_u32 m0, s{S_QD}, {e*1024}")
        a.nop(1)
        a(f"buffer_load_dwordx4 v{VQ[e]}, s[{R_Q}:{R_Q+3}], s48 offen lds")
    a(f"s_lshr_b32 s56, s{S_Y}, 1")
    a(f"s_mul_i32 s{S_WDD}, s56, 12288")
    a(f"s_and_b32 s56, s{S_Y}, 1")
    a("s_mul_i32 s56, s56, 6144")
    a(f"s_add_u32 s{S_WDD}, s{S_WDD}, s56")
    a(f"s_and_b32 s56, s{S_Y}, 1")
    a("s_mul_i32 s56, s56, 384")
    a(f"s_mul_i32 s57, s{S_SL}, 192")
    a("s_mov_b32 s58, 43691")
    a("s_movk_i32 s59, 2752")
    for e in range(6):
        a("v_add_u32 v6, s56, v2")
        if e: a(f"v_add_u32 v6, {64*e}, v6")
        a("v_mul_u32_u24 v7, s58, v6")
        a("v_lshrrev_b32 v7, 19, v7")
        a("v_mul_u32_u24 v8, 12, v7")
        a("v_sub_u32 v6, v6, v8")
        a("v_lshrrev_b32 v8, 2, v7")
        a("v_and_b32 v8, 2, v8")
        a("v_xor_b32 v6, v6, v8")
        a("v_lshlrev_b32 v6, 4, v6")
        a("v_mul_u32_u24 v7, s59, v7")
        a("v_add_u32 v6, v6, v7")
        a(f"v_add_u32 v{VW[e]}, s57, v6")
        a(f"s_add_u32 m0, s{S_WDD}, {e*1024}")
        a.nop(1)
        a(f"buffer_load_dwordx4 v{VW[e]}, s[{R_W}:{R_W+3}], s49 offen lds")
    stamp(a)
    def f_colsum_addr(t_):
        tr_lane192(t_, 6, 7, 8, 9)
        t_(f"s_and_b32 s56, s{S_Y}, 1")
        t_("s_mul_i32 s56, s56, 6")
        t_(f"s_lshr_b32 s57, s{S_Y}, 1")
        t_("s_mul_i32 s57, s57, 12288")
        t_(f"s_and_b32 s58, s{S_RB}, 1")
        t_(f"s_mul_i32 s58, s58, {32*192}")
        t_("s_add_u32 s57, s57, s58")
        for t in range(3):
            t_(f"s_add_u32 s59, s56, {2*t}")
            t_("v_xor_b32 v8, s59, v7")
            t_(f"v_lshl_add_u32 v{104+t}, v8, 4, v6")
            t_(f"v_add_u32 v{104+t}, s57, v{104+t}")
        t_(f"s_lshl_b32 s56, s{S_SL}, 4")
        t_(f"s_add_u32 s56, s56, s{S_RB}")
        t_("s_mul_i32 s56, s56, 768")
        t_(f"s_mul_i32 s57, s{S_Y}, 192")
        t_("s_add_u32 s56, s56, s57")
        t_(f"s_add_u32 s56, s56, {WS_CSP}")
        t_("v_lshl_add_u32 v40, v4, 4, s56")
        for i in range(4): t_(f"v_mov_b32 v{24+i}, 0x3f803f80")
    dma(1, cap(a, f_colsum_addr))
    a(f"s_load_dwordx2 s[56:57], s[0:1], {KA_H}")
    a(f"s_load_dwordx2 s[40:41], s[0:1], {KA_WD}")
    a(f"s_load_dwordx2 s[58:59], s[0:1], {KA_DD}")
    a("s_waitcnt vmcnt(10)")
    a("s_barrier")
    stamp(a)
    for t in range(3):
        for hf in range(2):
            a(f"ds_read_b64_tr_b16 {vr(12 + 4*t + 2*hf, 2)}, v{104+t} offset:{4*hf*192}")
    dma(2)
    a("s_waitcnt lgkmcnt(0)")
    ptr_srd(a, R_H, 56, D*S*2)
    ptr_srd(a, R_WD, 40, F*D*2)
    a("s_lshl_b32 s56, s2, 2")
    a(f"s_load_dword s{S_DD}, s[58:59], s56")
    for t in range(3):
        a(f"v_mfma_f32_16x16x32_bf16 {vr(28 + 4*t, 4)}, {vr(12+4*t,4)}, v[24:27], 0")
    a("s_waitcnt vmcnt(10)")
    a("s_barrier")
    a.nop(4)
    a("s_mov_b32 s56, 0x00010001")
    a("s_mov_b32 exec_lo, s56")
    a("s_mov_b32 exec_hi, s56")
    for t in range(3):
        a(f"buffer_store_dwordx4 {vr(28+4*t,4)}, v40, s[{R_WS}:{R_WS+3}], 0 offen offset:{t*64} sc1")
    a("s_mov_b64 exec, -1")
    S_FA1, S_FA2, S_FCS = 60, 61, 62
    def f_flags(t_):
        t_("s_lshr_b32 s56, s2, 4")
        t_("s_lshl_b32 s56, s56, 7")
        t_("s_and_b32 s57, s2, 15")
        t_("s_lshl_b32 s57, s57, 2")
        t_("s_add_u32 s56, s56, s57")
        t_(f"s_add_u32 s{S_FA1}, s56, {WS_FLAG + FL_AS*128}")
        t_("s_and_b32 s56, s2, 7")
        t_("s_lshl_b32 s56, s56, 7")
        t_("s_lshr_b32 s57, s2, 3")
        t_("s_lshl_b32 s57, s57, 2")
        t_("s_add_u32 s56, s56, s57")
        t_(f"s_add_u32 s{S_FA2}, s56, {WS_FLAG + FL_AK*128}")
        t_(f"s_lshl_b32 s56, s{S_SL}, 7")
        t_(f"s_lshl_b32 s57, s{S_RB}, 2")
        t_("s_add_u32 s56, s56, s57")
        t_(f"s_add_u32 s{S_FCS}, s56, {WS_FLAG + FL_CS*128}")
    dma(3, cap(a, f_flags))
    a("s_waitcnt vmcnt(10)")
    a("s_barrier")
    VPA, VPT = 100, 101
    def f_poll(t_):
        t_("s_lshr_b32 s58, s2, 5")
        t_("s_lshl_b32 s58, s58, 7")
        t_(f"s_add_u32 s58, s58, {WS_FLAG + FL_AK*128}")
        t_("v_and_b32 v6, 31, v2")
        t_(f"v_lshl_add_u32 v{VPA}, v6, 2, s58")
        t_(f"s_lshl_b32 s56, s{S_RB}, 7")
        t_(f"s_add_u32 s56, s56, {WS_FLAG + FL_AS*128}")
        t_(f"s_lshl_b32 s57, s{S_SL}, 7")
        t_(f"s_add_u32 s57, s57, {WS_FLAG + FL_CS*128}")
        t_("v_mov_b32 v6, s56")
        t_("v_mov_b32 v7, s57")
        t_("v_cmp_le_u32 vcc, 16, v2")
        t_.nop(2)
        t_("v_cndmask_b32 v6, v6, v7, vcc")
        t_("v_lshl_add_u32 v6, v3, 2, v6")
        t_("v_cmp_gt_u32 vcc, 32, v2")
        t_.nop(2)
        t_(f"v_cndmask_b32 v{VPA}, v{VPA}, v6, vcc")
    a(f"v_mov_b32 v8, {L_NON}")
    a("ds_read_b32 v9, v8")
    a("s_waitcnt lgkmcnt(0)")
    a(f"v_readfirstlane_b32 s{S_NONCE}, v9")
    lab = a.newlabel("Lyn")
    a(f"s_cmp_lg_u32 s{S_NONCE}, 0")
    a(f"s_cbranch_scc1 {lab}")
    get_nonce(a, 10)
    a(f"v_mov_b32 v9, s{S_NONCE}")
    a("ds_write_b32 v8, v9")
    a("s_waitcnt lgkmcnt(0)")
    a.label(lab)
    lab = a.newlabel("Lyp")
    a(f"s_cmp_lg_u32 s{S_Y}, 0")
    a(f"s_cbranch_scc1 {lab}")
    publish(a, 8, [S_FA1, S_FA2, S_FCS])
    a.label(lab)
    dma(4, cap(a, f_poll))
    a("s_waitcnt vmcnt(10)")
    a("s_barrier")
    VWD = [102, 103]; VWDY = 107
    def f_wd(t_):
        t_("v_lshrrev_b32 v5, 3, v2")
        t_("v_and_b32 v7, 7, v2")
        t_("v_and_b32 v6, 2, v5")
        t_("v_xor_b32 v6, v6, v7")
        t_("v_xor_b32 v8, 4, v6")
        t_("v_lshlrev_b32 v6, 4, v6")
        t_("v_lshlrev_b32 v8, 4, v8")
        t_(f"v_lshl_add_u32 v{VWD[0]}, v5, 10, v6")
        t_(f"v_lshl_add_u32 v{VWD[1]}, v5, 10, v8")
        t_(f"s_lshl_b32 s56, s{S_CB}, 7")
        t_(f"v_add_u32 v{VWD[0]}, s56, v{VWD[0]}")
        t_(f"v_add_u32 v{VWD[1]}, s56, v{VWD[1]}")
        t_(f"s_and_b32 s56, s{S_Y}, 1")
        t_(f"v_cmp_eq_u32 vcc, s56, 1") if False else None
        t_(f"s_cmp_eq_u32 s56, 1")
        t_(f"s_cselect_b64 vcc, -1, 0")
        t_(f"v_cndmask_b32 v{VWDY}, v{VWD[0]}, v{VWD[1]}, vcc")
        t_("v_subrev_u32 v9, 256, v0")
        t_("v_lshrrev_b32 v6, 7, v9")
        t_("v_and_b32 v7, 127, v9")
        t_("s_lshl_b32 s56, s2, 13")
        t_("v_lshlrev_b32 v6, 12, v6")
        t_("v_lshl_add_u32 v6, v7, 4, v6")
        t_(f"v_add_u32 v{VCO}, s56, v6")
        t_(f"v_subrev_u32 v{VCO+1}, 4, v{VCO}")
    VCH, VCXA, VCXS, VCHP = 108, 116, 124, 132
    VCO = 134
    dma(5, cap(a, f_wd))
    a("s_waitcnt vmcnt(10)")
    a("s_barrier")
    dma(6)
    a("s_waitcnt vmcnt(10)")
    a("s_barrier")
    a(f"buffer_load_dword v{VPT}, v{VPA}, s[{R_WS}:{R_WS+3}], 0 offen sc1")
    dma(7)
    a("s_waitcnt vmcnt(10)")
    lab = a.newlabel("Lyq")
    a(f"v_cmp_ne_u32 vcc, s{S_NONCE}, v{VPT}")
    a(f"s_cbranch_vccz {lab}")
    poll(a, VPA, VPT)
    a.label(lab)
    a("s_barrier")
    def wd_pref(rs):
        for r in rs:
            ks = r if r < NRES else 22 + (r - NRES)
            a(f"s_lshl_b32 s56, s{S_Y}, 13")
            a(f"s_add_u32 s56, s56, {ks*32768}")
            a(f"s_lshl_b32 s57, s{S_Y}, 10")
            a(f"s_add_u32 m0, s57, {r*4096}")
            a.nop(1)
            a(f"buffer_load_dwordx4 v{VWDY}, s[{R_WD}:{R_WD+3}], s56 offen lds")
    a("v_lshlrev_b32 v8, 4, v2")
    a(f"s_mul_i32 s56, s{S_SL}, {16*768}")
    a(f"s_mul_i32 s57, s{S_Y}, 3072")
    a("s_add_u32 s56, s56, s57")
    a(f"s_add_u32 s56, s56, {WS_CSP}")
    for i in range(3):
        a(f"s_add_u32 m0, s57, {L_CONV + i*1024}")
        a(f"s_add_u32 s58, s56, {i*1024}")
        a(f"buffer_load_dwordx4 v8, s[{R_WS}:{R_WS+3}], s58 offen sc1 lds")
    a(f"s_lshl_b32 s56, s{S_RB}, 10")
    a(f"s_add_u32 s56, s56, {WS_STATS}")
    lab = a.newlabel("Lys")
    a(f"s_cmp_lg_u32 s{S_Y}, 3")
    a(f"s_cbranch_scc1 {lab}")
    a(f"s_mov_b32 m0, {L_ST}")
    a.nop(1)
    a(f"buffer_load_dwordx4 v8, s[{R_WS}:{R_WS+3}], s56 offen sc1 lds")
    a.label(lab)
    a("s_waitcnt vmcnt(0)")
    a("s_barrier")
    stamp(a)
    a(f"s_mov_b32 s56, {WS_KVT}")
    for e in range(2):
        a(f"buffer_load_dwordx4 {vr(VCH+4*e,4)}, v{VCO}, s[{R_H}:{R_H+3}], 0 offen offset:{e*2048}")
        a(f"buffer_load_dword v{VCHP+e}, v{VCO+1}, s[{R_H}:{R_H+3}], 0 offen offset:{e*2048}")
        a(f"buffer_load_dwordx4 {vr(VCXA+4*e,4)}, v{VCO}, s[{R_WS}:{R_WS+3}], s56 offen offset:{e*2048} sc1")
        a(f"buffer_load_dwordx4 {vr(VCXS+4*e,4)}, v{VCO+1}, s[{R_WS}:{R_WS+3}], s56 offen offset:{e*2048} sc1")
    lab = a.newlabel("Lyc")
    a(f"s_cmp_ge_u32 s{S_Y}, 3")
    a(f"s_cbranch_scc1 {lab}")
    a("v_lshlrev_b32 v8, 2, v9")
    a(f"v_add_u32 v10, {L_CONV}, v8")
    for r in range(16):
        a(f"ds_read_b32 v{12+r}, v10 offset:{r*768}")
    a("s_waitcnt lgkmcnt(0)")
    for r in range(1, 16):
        a(f"v_add_f32 v12, v12, v{12+r}")
    a(f"v_add_u32 v8, {L_CS}, v8")
    a("ds_write_b32 v8, v12")
    a.label(lab)
    a("s_waitcnt lgkmcnt(0)")
    a("s_barrier")
    stamp(a)
    wd_pref(range(0, 10))
    a("s_waitcnt vmcnt(10)")
    a("v_lshrrev_b32 v6, 7, v9")
    a("v_and_b32 v7, 127, v9")
    a(f"v_mul_u32_u24 v8, {C_CH}, v6")
    a(f"v_add_u32 v10, {L_CONV}, v8")
    a("v_lshl_add_u32 v8, v7, 4, v10")
    for i in range(4): a(f"v_mov_b32 v{12+i}, 0")
    a("v_cmp_eq_u32 vcc, 0, v7")
    a.nop(2)
    a(f"v_cndmask_b32 v{VCHP}, v{VCHP}, v12, vcc")
    for e in range(2):
        h = VCH + 4*e
        a(f"ds_write_b128 v8, {vr(h,4)} offset:{C_HO + 64 + e*2048}")
        a(f"v_alignbit_b32 v16, v{h}, v{VCHP+e}, 16")
        a(f"v_alignbit_b32 v17, v{h+1}, v{h}, 16")
        a(f"v_alignbit_b32 v18, v{h+2}, v{h+1}, 16")
        a(f"v_alignbit_b32 v19, v{h+3}, v{h+2}, 16")
        a(f"ds_write_b128 v8, v[16:19] offset:{C_HEV + 64 + e*2048}")
        a(f"ds_write_b128 v8, {vr(VCXA+4*e,4)} offset:{C_XO + e*2048}")
        a(f"ds_write_b128 v8, {vr(VCXS+4*e,4)} offset:{C_XE + e*2048}")
        a.nop(1)
    a("v_cmp_gt_u32 vcc, 4, v7")
    a("s_and_saveexec_b64 s[42:43], vcc")
    a(f"ds_write_b128 v8, v[12:15] offset:{C_HEV}")
    a(f"ds_write_b128 v8, v[12:15] offset:{C_HO}")
    a("s_mov_b64 exec, s[42:43]")
    a("v_cmp_gt_u32 vcc, 32, v7")
    a("s_and_saveexec_b64 s[42:43], vcc")
    a(f"ds_write_b128 v8, v[12:15] offset:{C_XO + 4096}")
    a("s_mov_b64 exec, s[42:43]")
    a("v_cmp_gt_u32 vcc, 32, v7")
    a("v_cmp_lt_u32 s[56:57], 0, v7")
    a("s_and_b64 vcc, vcc, s[56:57]")
    a("s_and_saveexec_b64 s[42:43], vcc")
    a(f"ds_write_b128 v8, v[12:15] offset:{C_XE + 4096}")
    a("s_mov_b64 exec, s[42:43]")
    a("v_cmp_eq_u32 vcc, 127, v7")
    a("s_and_saveexec_b64 s[42:43], vcc")
    a(f"v_mov_b32 v12, v{VCXA+7}")
    a(f"ds_write_b128 v10, v[12:15] offset:{C_XE + 4096}")
    a("s_mov_b64 exec, s[42:43]")
    wd_pref(range(10, 30))
    a("s_waitcnt vmcnt(0) lgkmcnt(0)")
    a("s_barrier")
    S_CH, S_HALF, S_CB0 = 44, 45, 46
    a(f"s_lshr_b32 s{S_CH}, s{S_Y}, 1")
    a(f"s_and_b32 s{S_HALF}, s{S_Y}, 1")
    a(f"s_mul_i32 s{S_CB0}, s{S_CH}, {C_CH}")
    a(f"s_add_u32 s{S_CB0}, s{S_CB0}, {L_CONV}")
    a(f"s_lshl_b32 s56, s{S_Y}, 2")
    a(f"s_add_u32 s56, s56, {L_CF}")
    a("v_mov_b32 v11, s56")
    a("s_xor_b32 s56, s56, 4")
    a("v_mov_b32 v12, s56")
    a("v_lshrrev_b32 v45, 1, v3")
    a("v_lshlrev_b32 v46, 3, v45")
    a("v_lshl_add_u32 v46, v4, 4, v46")
    a("v_and_b32 v47, 1, v3")
    a(f"v_mul_u32_u24 v48, {C_HO - C_HEV}, v47")
    a("v_add_u32 v46, v46, v48")
    a(f"s_lshl_b32 s56, s{S_HALF}, 8")
    a(f"s_add_u32 s56, s56, s{S_CB0}")
    a(f"s_add_u32 s57, s56, {C_HEV + 8}")
    a("v_add_u32 v46, s57, v46")
    a("v_lshlrev_b32 v49, 4, v4")
    a("v_lshlrev_b32 v50, 6, v45")
    a("v_sub_u32 v49, v49, v50")
    a(f"v_mul_u32_u24 v48, {(C_XE + 456) - (C_XO + 448)}, v47")
    a("v_sub_u32 v49, v49, v48")
    a(f"s_add_u32 s57, s56, {C_XE + 456}")
    a("v_add_u32 v49, s57, v49")
    stamp(a)
    VA, VB = 46, 49
    CACC = 52
    CFS = [108, 172]
    def fa(s, i): return CFS[s] + 4*i
    def fb(s, i): return CFS[s] + 32 + 4*i
    def creads(c, s):
        r = []
        for m in range(8):
            for hf in range(2):
                r.append(f"ds_read_b64 {vr(fa(s,m)+2*hf,2)}, v{VA} offset:{m*512 + c*64 + hf*8}")
            for hf in range(2):
                r.append(f"ds_read_b64 {vr(fb(s,m)+2*hf,2)}, v{VB} offset:{(7-m)*512 + c*64 + hf*8}")
        return r
    pairs = []
    for m in range(8):
        ps = [(x, m) for x in range(m)] + [(m, x) for x in range(m)] + [(m, m)]
        pairs += [p for p in ps if p[0] + p[1] <= 7]
    touched = set()
    for x in creads(0, 0): a(x)
    for c in range(4):
        s = c & 1
        nxt = creads(c + 1, s ^ 1) if c < 3 else []
        a("s_waitcnt lgkmcnt(0)")
        m = []
        for (a1, u) in pairs:
            Tt = a1 + u
            cc = vr(CACC + 4*Tt, 4) if Tt in touched else "0"
            touched.add(Tt)
            m.append(f"v_mfma_f32_16x16x32_bf16 {vr(CACC+4*Tt,4)}, {vr(fa(s,a1),4)}, {vr(fb(s,u),4)}, {cc}")
        f = [[] for _ in m]
        for k, x in enumerate(nxt):
            f[(k * 28) // 32].append(x)
        interleave(a, m, f)
    stamp(a)
    a.nop(4)
    a("v_lshlrev_b32 v5, 4, v2")
    a("v_mov_b32 v13, 2")
    a("ds_write_b32 v11, v13")
    a(f"s_lshl_b32 s56, s{S_HALF}, 12")
    a(f"s_add_u32 s56, s56, s{S_CB0}")
    a("v_add_u32 v6, s56, v5")
    a(f"s_xor_b32 s57, s{S_HALF}, 1")
    a("s_lshl_b32 s57, s57, 12")
    a(f"s_add_u32 s57, s57, s{S_CB0}")
    a("v_add_u32 v7, s57, v5")
    a("v_lshlrev_b32 v8, 4, v4")
    a("v_lshl_add_u32 v8, v47, 2, v8")
    a("v_lshl_add_u32 v8, v45, 6, v8")
    a(f"s_lshl_b32 s56, s{S_HALF}, 11")
    a(f"s_sub_u32 s56, s{S_CB0}, s56")
    a(f"s_add_u32 s56, s56, {C_XO + 2042*2 - 3*512}")
    a("v_sub_u32 v9, s56, v8")
    K = 32
    for t in range(4):
        a(f"ds_read_b32 v{K+2*t}, v9 offset:{(3-t)*512}")
        a(f"ds_read_b32 v{K+2*t+1}, v9 offset:{(3-t)*512+8}")
    lds_flag_wait(a, 12, 14, 2)
    lk0 = a.newlabel("Lr"); lk1 = a.newlabel("Lr")
    a(f"s_cmp_eq_u32 s{S_HALF}, 0")
    a(f"s_cbranch_scc0 {lk0}")
    for t in range(4):
        a(f"ds_write_b128 v6, {vr(CACC+16+4*t,4)} offset:{t*1024}")
    a(f"s_branch {lk1}")
    a.label(lk0)
    for t in range(4):
        a(f"ds_write_b128 v6, {vr(CACC+4*t,4)} offset:{t*1024}")
    a.nop(2)
    for i in range(16):
        a(f"v_mov_b32 v{CACC+i}, v{CACC+16+i}")
    a.label(lk1)
    a("s_waitcnt lgkmcnt(0)")
    a("v_mov_b32 v13, 3")
    a("ds_write_b32 v11, v13")
    a(f"s_lshl_b32 s57, s{S_DD}, 16")
    a(f"s_and_b32 s58, s{S_DD}, 0xffff0000")
    a(f"s_cmp_eq_u32 s{S_CH}, 0")
    a("s_cselect_b32 s55, s57, s58")
    a(f"s_lshl_b32 s54, s{S_HALF}, 11")
    a(f"s_add_u32 s54, s54, s{S_CB0}")
    a(f"s_add_u32 s54, s54, {C_XE}")
    a("v_add_u32 v10, s54, v8")
    for t in range(4):
        k4, k0 = K + 2*t, K + 2*t + 1
        a(f"v_and_b32 v{16+4*t}, 0xffff0000, v{k0}")
        a(f"v_lshlrev_b32 v{17+4*t}, 16, v{k0}")
        a(f"v_and_b32 v{18+4*t}, 0xffff0000, v{k4}")
        a(f"v_lshlrev_b32 v{19+4*t}, 16, v{k4}")
    for i in range(16):
        a(f"v_mul_f32 v{16+i}, s55, v{16+i}")
    lds_flag_wait(a, 12, 14, 3)
    R = 84
    for t in range(4):
        a(f"ds_read_b128 {vr(R+4*t,4)}, v7 offset:{t*1024}")
    a("s_waitcnt lgkmcnt(0)")
    for i in range(16):
        a(f"v_add_f32 v{CACC+i}, v{CACC+i}, v{R+i}")
    for t in range(4):
        y = CACC + 4*t
        a(f"v_cvt_pk_bf16_f32 v{R+2*t}, v{y}, v{y+1}")
        a(f"v_cvt_pk_bf16_f32 v{R+2*t+1}, v{y+2}, v{y+3}")
    for t in range(4):
        y = CACC + 4*t
        a(f"v_lshlrev_b32 v{y}, 16, v{R+2*t}")
        a(f"v_and_b32 v{y+1}, 0xffff0000, v{R+2*t}")
        a(f"v_lshlrev_b32 v{y+2}, 16, v{R+2*t+1}")
        a(f"v_and_b32 v{y+3}, 0xffff0000, v{R+2*t+1}")
    for i in range(16):
        a(f"v_add_f32 v{CACC+i}, v{CACC+i}, v{16+i}")
    for t in range(4):
        y = CACC + 4*t
        a(f"v_cvt_pk_bf16_f32 v{R+2*t}, v{y}, v{y+1}")
        a(f"v_cvt_pk_bf16_f32 v{R+2*t+1}, v{y+2}, v{y+3}")
    for t in range(4):
        a(f"ds_write_b32 v10, v{R+2*t} offset:{t*512}")
        a(f"ds_write_b32 v10, v{R+2*t+1} offset:{t*512+8}")
    a("v_add_u32 v11, s54, v5")
    a("s_lshl_b32 s56, s2, 1")
    a(f"s_add_u32 s56, s56, s{S_CH}")
    a("s_lshl_b32 s56, s56, 12")
    a(f"s_lshl_b32 s57, s{S_HALF}, 11")
    a("s_add_u32 s56, s56, s57")
    a(f"s_add_u32 s56, s56, {WS_YT}")
    a("v_add_u32 v12, s56, v5")
    a("s_waitcnt lgkmcnt(0)")
    a("ds_read_b128 v[24:27], v11")
    a("ds_read_b128 v[28:31], v11 offset:1024")
    a("s_waitcnt lgkmcnt(1)")
    a(f"buffer_store_dwordx4 v[24:27], v12, s[{R_WS}:{R_WS+3}], 0 offen sc1")
    a("s_waitcnt lgkmcnt(0)")
    a(f"buffer_store_dwordx4 v[28:31], v12, s[{R_WS}:{R_WS+3}], 0 offen offset:1024 sc1")
    stamp(a)
    a(f"s_lshr_b32 s47, s{S_Y}, 1")
    a(f"s_and_b32 s48, s{S_Y}, 1")
    a("s_mul_i32 s50, s47, 22")
    a("s_add_u32 s50, s50, s48")
    a("s_lshl_b32 s51, s47, 13")
    a("s_lshl_b32 s52, s48, 12")
    a("s_add_u32 s51, s51, s52")
    a(f"s_add_u32 s51, s51, {F2_HB}")
    a(f"s_mul_i32 s53, s{S_RB2}, 43")
    a("s_add_u32 s53, s53, s50")
    a("s_lshl_b32 s53, s53, 12")
    a(f"s_add_u32 s53, s53, {WS_HF}")
    a("v_lshlrev_b32 v17, 4, v2")
    final_loads(a)
    a("s_barrier")
    def dma2(I):
        slot = I % F2_NSLOT
        for st in range(4):
            a(f"s_add_u32 m0, s51, {slot*F2_SLOT + st*1024}")
            a(f"s_add_u32 s56, s53, {I*8192 + st*1024}")
            a(f"buffer_load_dwordx4 v17, s[{R_WS}:{R_WS+3}], s56 offen lds")
    dma2(4); dma2(5)
    a("s_lshr_b32 s56, s2, 5")
    a("s_lshl_b32 s56, s56, 9")
    a("s_and_b32 s57, s2, 31")
    a("s_lshl_b32 s57, s57, 4")
    a("s_add_u32 s56, s56, s57")
    a(f"s_lshl_b32 s57, s{S_Y}, 2")
    a("s_add_u32 s56, s56, s57")
    a(f"s_add_u32 s55, s56, {WS_FLAG + FL_C2*128}")
    for I in range(1, 8):
        last = min(max(5, I + 4), 10)
        if I == 7:
            a("s_waitcnt vmcnt(0)")
        elif 4 <= I + 1:
            a(f"s_waitcnt vmcnt({4*(last - (I + 1))})")
        a("s_barrier")
        if I == 3:
            publish(a, 8, [55])
        if 6 <= I + 5 <= 10: dma2(I + 5)
    a(f"s_lshl_b32 s56, s{S_CB}, 9")
    a(f"s_add_u32 s56, s56, {WS_FLAG + FL_C2*128}")
    a("v_lshl_add_u32 v6, v2, 3, s56")
    lab = a.newlabel("Lpc"); out = a.newlabel("Lpc")
    a("s_mov_b32 s40, 0")
    a.label(lab)
    a(f"buffer_load_dwordx2 v[8:9], v6, s[{R_WS}:{R_WS+3}], 0 offen sc1")
    a("s_add_u32 s40, s40, 1")
    a("s_waitcnt vmcnt(0)")
    a(f"v_cmp_ne_u32 vcc, s{S_NONCE}, v8")
    a(f"v_cmp_ne_u32 s[56:57], s{S_NONCE}, v9")
    a("s_or_b64 vcc, vcc, s[56:57]")
    a(f"s_cmp_ge_u32 s40, {POLL_MAX}")
    a(f"s_cbranch_scc1 {out}")
    a(f"s_cbranch_vccnz {lab}")
    a.label(out)
    a("v_lshrrev_b32 v5, 3, v2")
    a("v_and_b32 v7, 7, v2")
    for e in range(2):
        a("v_and_b32 v6, 2, v5")
        if e: a("v_or_b32 v6, 4, v6")
        a("v_xor_b32 v6, v6, v7")
        a("v_lshlrev_b32 v6, 4, v6")
        a("v_lshl_add_u32 v6, v5, 12, v6")
        a(f"s_lshl_b32 s56, s{S_CB}, 18")
        a(f"s_lshl_b32 s57, s{S_Y}, 16")
        a("s_add_u32 s56, s56, s57")
        a(f"s_lshl_b32 s57, s{S_RB2}, 7")
        a("s_add_u32 s56, s56, s57")
        a(f"s_add_u32 s56, s56, {WS_YT + e*32768}")
        a(f"s_lshl_b32 s57, s{S_Y}, 11")
        a(f"s_add_u32 m0, s57, {F2_YT + e*1024}")
        a.nop(1)
        a(f"buffer_load_dwordx4 v6, s[{R_WS}:{R_WS+3}], s56 offen sc1 lds")
    a("s_barrier")

def final(a):
    a.label("Lfinal")
    a("s_waitcnt lgkmcnt(0) vmcnt(0)")
    a("s_barrier")
    a(f"s_and_b32 s56, s{S_W}, 3")
    a(f"s_lshr_b32 s59, s{S_W}, 2")
    a(f"s_mul_i32 s57, s56, {16*F2_PP}")
    a("s_lshl_b32 s58, s59, 7")
    a("s_add_u32 s57, s57, s58")
    a(f"v_mul_u32_u24 v6, {F2_PP}, v3")
    a("v_lshl_add_u32 v6, v4, 5, v6")
    a("v_add_u32 v6, s57, v6")
    a("ds_read_b128 v[40:43], v6")
    a("ds_read_b128 v[44:47], v6 offset:16")
    a(f"ds_read_b128 v[48:51], v6 offset:{64*F2_PP}")
    a(f"ds_read_b128 v[52:55], v6 offset:{64*F2_PP+16}")
    a("v_lshrrev_b32 v7, 2, v2")
    a("v_and_b32 v7, 3, v7")
    a("v_and_b32 v16, 2, v7")
    a("v_and_b32 v17, 1, v4")
    a("v_lshl_or_b32 v16, v17, 2, v16")
    a("v_and_b32 v17, 3, v2")
    a("v_lshrrev_b32 v18, 1, v17")
    a("s_lshl_b32 s57, s56, 1")
    a("v_add_u32 v18, s57, v18")
    a("v_xor_b32 v18, v18, v16")
    a("v_lshlrev_b32 v18, 4, v18")
    a("v_and_b32 v17, 1, v17")
    a("v_lshl_add_u32 v18, v17, 3, v18")
    a("v_lshl_add_u32 v7, v4, 3, v7")
    a("v_lshl_add_u32 v18, v7, 7, v18")
    a("s_lshl_b32 s57, s59, 12")
    a(f"s_add_u32 s57, s57, {F2_YT}")
    a("v_add_u32 v18, s57, v18")
    a("ds_read_b64_tr_b16 v[56:57], v18")
    a("ds_read_b64_tr_b16 v[58:59], v18 offset:512")
    a(f"s_load_dwordx2 s[40:41], s[0:1], {KA_OUT}")
    a("s_mov_b32 s56, 0xbfb8aa3b")
    a("s_waitcnt lgkmcnt(0)")
    ptr_srd(a, R_OUT, 40, S*D*2)
    for j in range(8): a(f"v_add_f32 v{40+j}, v{40+j}, v{48+j}")
    for j in range(8): a(f"v_mul_f32 v{48+j}, s56, v{40+j}")
    for j in range(8): a(f"v_exp_f32 v{48+j}, v{48+j}")
    for m in range(4):
        a(f"v_lshlrev_b32 v{60+2*m}, 16, v{VFQ+m}")
        a(f"v_and_b32 v{61+2*m}, 0xffff0000, v{VFQ+m}")
        a(f"v_lshlrev_b32 v{68+2*m}, 16, v{56+m}")
        a(f"v_and_b32 v{69+2*m}, 0xffff0000, v{56+m}")
    for j in range(8): a(f"v_add_f32 v{48+j}, 1.0, v{48+j}")
    for j in range(8): a(f"v_rcp_f32 v{48+j}, v{48+j}")
    for j in range(8): a(f"v_sub_f32 v{76+j}, v{60+j}, v{VFS}")
    for j in range(8): a(f"v_mul_f32 v{76+j}, v{76+j}, v{VFS+1}")
    for j in range(8): a(f"v_mul_f32 v{40+j}, v{40+j}, v{48+j}")
    for j in range(8): a(f"v_mul_f32 v{76+j}, v{76+j}, v{68+j}")
    for j in range(8): a(f"v_fmac_f32 v{60+j}, v{76+j}, v{40+j}")
    for m in range(4):
        a(f"v_cvt_pk_bf16_f32 v{8+m}, v{60+2*m}, v{61+2*m}")
    a(f"buffer_store_dwordx4 v[8:11], v{VFO}, s[{R_OUT}:{R_OUT+3}], 0 offen")
    asmlib.Stamps.n = 15
    stamp(a)
    if asmlib.PROF:
        a("s_waitcnt lgkmcnt(0)")
        a("s_lshl_b32 s60, s2, 3")
        a(f"s_add_u32 s60, s60, s{S_W}")
        a("s_lshl_b32 s60, s60, 7")
        a(f"s_add_u32 s60, s60, {WS_PROF}")
        a("v_mov_b32 v20, s60")
        for i in range(16):
            a(f"v_mov_b32 v21, s{STAMP_BASE+2*i}")
            a(f"buffer_store_dword v21, v20, s[{R_WS}:{R_WS+3}], 0 offen offset:{4*i}")
            a.nop(2)
    a.label("Ldone")
    a("s_endpgm")

def gen():
    a = A()
    stamp_reset()
    prologue(a)
    path_X(a)
    path_Y(a)
    final(a)
    return a

def build(prof=False):
    asmlib.PROF = prof
    a = gen()
    hdr = open("recurrent_scan__ssm_conv_h3__glu_gated_geglu__prompt.s.ref").read().split("; Override")[0]
    s = hdr + f"; @launch grid=(256,1,1) block=(512,1,1) lds={LDS_TOTAL}\n"
    s += '.amdgcn_target "amdgcn-amd-amdhsa--gfx950"\n.text\n'
    s += kernel_header(NAME) + a.text()
    s += '.section .rodata,"a"\n.p2align 6\n' + kernel_desc(NAME, 256, 100)
    return s

if __name__ == "__main__":
    prof = len(sys.argv) > 2 and sys.argv[2] == "prof"
    open(sys.argv[1], "w").write(build(prof))
```

```python
import sys, struct
import asmlib
from asmlib import *

NAME = "recurrent_scan__ssm_conv_h3__glu_gated_geglu__prompt_kernel"
S, D, F = 2048, 512, 1376
KA_Q, KA_K, KA_V, KA_SK, KA_H, KA_DD, KA_BX, KA_WG, KA_WU, KA_WD, KA_OUT, KA_DBG, KA_WS = [8*i for i in range(13)]

WS_KVT   = 0x000000
WS_STATS = 0x200000
WS_CSP   = 0x210000
WS_FLAG  = 0x300000
FL_AS, FL_AK, FL_CS, FL_C, FL_H = 0, 16, 24, 40, 48
WS_HF    = 0x400000
WS_YT    = 0xA00000
WS_SIZE  = 0x10000000

def f2u(x): return struct.unpack("<I", struct.pack("<f", x))[0]

S_W = 3
R_Q, R_WS, R_W, R_K, R_V, R_SK, R_DBG = 4, 8, 12, 16, 20, 24, 28
R_H, R_WD, R_OUT = R_K, R_V, R_SK
S_RB, S_SL, S_NONCE, S_RB2, S_CB, S_JJ = 32, 33, 36, 37, 38, 39
S_A, S_B = 34, 35
S_DD = 63

F1_WSLOT = 24576
F1_QBASE = 73728
F1_QSLOT = 16384
L_CS = 122880
L_ST = L_CS + 768
L_NON = L_ST + 1024
L_CF = L_NON + 16
L_CONV = L_CF + 48
C_HEV, C_HO, C_XO, C_XE = 0, 4224, 8448, 13056
C_CH = 17664
LDS_TOTAL = 163840
assert L_CONV + 2*C_CH <= LDS_TOTAL
L_RED = 0
F2_SLOT = 16384
F2_NSLOT = 6
F2_LW = 0
F2_HB = 14*4096
F2_YT = F2_HB + 6*16384
F2_P = 0
F2_PP = 272
NRES = 15

POLL_MAX = 20000

def wave_sum16(a, v):
    a(f"v_add_f32_dpp v{v}, v{v}, v{v} quad_perm:[1,0,3,2] row_mask:0xf bank_mask:0xf")
    a.nop(2)
    a(f"v_add_f32_dpp v{v}, v{v}, v{v} quad_perm:[2,3,0,1] row_mask:0xf bank_mask:0xf")
    a.nop(2)
    a(f"v_add_f32_dpp v{v}, v{v}, v{v} row_half_mirror row_mask:0xf bank_mask:0xf")
    a.nop(2)
    a(f"v_add_f32_dpp v{v}, v{v}, v{v} row_mirror row_mask:0xf bank_mask:0xf")

def wave_sum64(a, v, s0):
    a.nop(2)
    wave_sum16(a, v)
    a.nop(1)
    for i in range(4):
        a(f"v_readlane_b32 s{s0+i}, v{v}, {16*i}")
    a.nop(2)
    a(f"v_mov_b32 v{v}, s{s0}")
    for i in range(1, 4):
        a(f"v_add_f32 v{v}, s{s0+i}, v{v}")

def ptr_srd(a, dst, lo, nbytes):
    srd(a, dst, lo, lo + 1, nbytes)

def get_nonce(a, vt):
    lab = a.newlabel("Lnon"); out = a.newlabel("Lnon")
    a(f"s_cmp_lg_u32 s{S_NONCE}, 0")
    a(f"s_cbranch_scc1 {out}")
    a("s_mov_b32 s40, 0")
    a(f"v_mov_b32 v{vt}, 0")
    a.label(lab)
    a(f"buffer_load_dword v{vt+1}, v{vt}, s[{R_DBG}:{R_DBG+3}], 0 offen sc1")
    a("s_add_u32 s40, s40, 1")
    a("s_waitcnt vmcnt(0)")
    a(f"v_readfirstlane_b32 s{S_NONCE}, v{vt+1}")
    a(f"s_cmp_ge_u32 s40, {POLL_MAX}")
    a(f"s_cbranch_scc1 {out}")
    a(f"s_cmp_eq_u32 s{S_NONCE}, 0")
    a(f"s_cbranch_scc1 {lab}")
    a.label(out)

def publish(a, vt, addr_sgprs):
    a(f"v_mov_b32 v{vt+1}, s{S_NONCE}")
    a("s_mov_b64 exec, 1")
    for s in addr_sgprs:
        a(f"v_mov_b32 v{vt}, s{s}")
        a(f"buffer_store_dword v{vt+1}, v{vt}, s[{R_WS}:{R_WS+3}], 0 offen sc1")
        a.nop(1)
    a("s_mov_b64 exec, -1")

def poll(a, vaddr, vt, first_issued=False):
    lab = a.newlabel("Lpoll"); out = a.newlabel("Lpoll"); chk = a.newlabel("Lpoll")
    a("s_mov_b32 s40, 0")
    if first_issued:
        a(f"s_branch {chk}")
    a.label(lab)
    a(f"buffer_load_dword v{vt}, v{vaddr}, s[{R_WS}:{R_WS+3}], 0 offen sc1")
    a.label(chk)
    a("s_add_u32 s40, s40, 1")
    a("s_waitcnt vmcnt(0)")
    a(f"v_cmp_ne_u32 vcc, s{S_NONCE}, v{vt}")
    a(f"s_cmp_ge_u32 s40, {POLL_MAX}")
    a(f"s_cbranch_scc1 {out}")
    a(f"s_cbranch_vccnz {lab}")
    a.label(out)

def interleave(a, m, fills):
    for i, x in enumerate(m):
        a(x)
        for y in fills[i]: a(y)

def spread(n_m, items, start=0, per=1):
    f = [[] for _ in range(n_m)]
    i = start
    for k, x in enumerate(items):
        slot = min(start + k // per, n_m - 1)
        f[slot].append(x)
    return f

VFQ, VFS, VFO = 236, 240, 242
FL_C2 = 112

def prologue(a):
    a("s_cmp_ge_u32 s2, 256")
    a("s_cbranch_scc1 Ldone")
    stamp(a)
    a("s_load_dwordx4 s[40:43], s[0:1], 0")
    a("s_load_dwordx4 s[44:47], s[0:1], 16")
    a(f"s_load_dwordx4 s[48:51], s[0:1], {KA_WG}")
    a(f"s_load_dwordx4 s[52:55], s[0:1], {KA_DBG}")
    a("v_lshrrev_b32 v1, 6, v0")
    a("v_and_b32 v2, 63, v0")
    a(f"v_readfirstlane_b32 s{S_W}, v1")
    a("v_and_b32 v3, 15, v2")
    a("v_lshrrev_b32 v4, 4, v2")
    a("s_and_b32 s56, s2, 7")
    a("s_lshr_b32 s57, s2, 3")
    a("s_and_b32 s58, s56, 1")
    a("s_lshl_b32 s58, s58, 3")
    a("s_and_b32 s59, s57, 7")
    a(f"s_add_u32 s{S_RB}, s58, s59")
    a("s_lshr_b32 s58, s56, 1")
    a("s_lshl_b32 s58, s58, 2")
    a("s_lshr_b32 s59, s57, 3")
    a(f"s_add_u32 s{S_SL}, s58, s59")
    a("s_lshr_b32 s58, s56, 1")
    a("s_lshl_b32 s58, s58, 3")
    a("s_and_b32 s59, s57, 7")
    a(f"s_add_u32 s{S_RB2}, s58, s59")
    a("s_and_b32 s58, s56, 1")
    a("s_lshl_b32 s58, s58, 2")
    a("s_lshr_b32 s59, s57, 3")
    a(f"s_add_u32 s{S_CB}, s58, s59")
    a(f"s_mov_b32 s{S_NONCE}, 0")
    a("s_waitcnt lgkmcnt(0)")
    ptr_srd(a, R_Q, 40, S*D*2)
    ptr_srd(a, R_WS, 54, WS_SIZE)
    ptr_srd(a, R_DBG, 52, 256)
    lab = a.newlabel("Lpt")
    a(f"s_cmp_lg_u32 s{S_W}, 3")
    a(f"s_cbranch_scc1 {lab}")
    a("v_lshlrev_b32 v250, 21, v2")
    a("s_mov_b64 exec, 0x3f")
    a(f"buffer_load_dword v251, v250, s[{R_WS}:{R_WS+3}], 0 offen")
    a("s_mov_b64 exec, -1")
    a(f"s_load_dwordx2 s[56:57], s[0:1], {KA_WD}")
    a(f"s_load_dwordx2 s[58:59], s[0:1], {KA_H}")
    a("s_waitcnt lgkmcnt(0)")
    a("s_mov_b32 s60, s58")
    a("s_mov_b32 s61, s59")
    ptr_srd(a, 56+0, 56, 4096) if False else None
    a("s_and_b32 s57, s57, 0xffff")
    a("s_mov_b32 s58, 4096")
    a("s_mov_b32 s59, 0x00020000")
    a("v_mov_b32 v250, 0")
    a("s_mov_b64 exec, 1")
    a("buffer_load_dword v252, v250, s[56:59], 0 offen")
    a("s_mov_b32 s56, s60")
    a("s_and_b32 s57, s61, 0xffff")
    a("buffer_load_dword v253, v250, s[56:59], 0 offen")
    a("s_mov_b64 exec, -1")
    a.label(lab)
    a(f"s_cmp_ge_u32 s{S_W}, 4")
    a("s_cbranch_scc1 LY")

def final_loads(a):
    a(f"s_and_b32 s56, s{S_W}, 3")
    a(f"s_lshl_b32 s57, s{S_RB2}, 6")
    a("s_lshl_b32 s58, s56, 4")
    a("s_add_u32 s57, s57, s58")
    a("v_add_u32 v5, s57, v3")
    a(f"s_lshl_b32 s58, s{S_CB}, 7")
    a(f"s_lshr_b32 s59, s{S_W}, 2")
    a("s_lshl_b32 s59, s59, 6")
    a("s_add_u32 s58, s58, s59")
    a("v_lshlrev_b32 v6, 10, v5")
    a("v_lshl_add_u32 v6, v4, 4, v6")
    a(f"v_add_u32 v{VFO}, s58, v6")
    a(f"buffer_load_dwordx4 {vr(VFQ,4)}, v{VFO}, s[{R_Q}:{R_Q+3}], 0 offen")
    a("v_lshlrev_b32 v6, 3, v5")
    a(f"v_add_u32 v6, {WS_STATS}, v6")
    a(f"buffer_load_dwordx2 {vr(VFS,2)}, v6, s[{R_WS}:{R_WS+3}], 0 offen sc1")

def tr_lane128(a, vdst, vf, t0, t1):
    a(f"v_lshrrev_b32 v{t0}, 2, v2")
    a(f"v_and_b32 v{t0}, 3, v{t0}")
    a(f"v_lshl_add_u32 v{vdst}, v4, 3, v{t0}")
    a(f"v_lshlrev_b32 v{vdst}, 7, v{vdst}")
    a(f"v_and_b32 v{t1}, 3, v2")
    a(f"v_and_b32 v{vf}, 1, v{t1}")
    a(f"v_lshl_add_u32 v{vdst}, v{vf}, 3, v{vdst}")
    a(f"v_lshrrev_b32 v{t1}, 1, v{t1}")
    a(f"v_lshl_add_u32 v{vdst}, v{t1}, 4, v{vdst}")
    a(f"v_and_b32 v{t0}, 2, v{t0}")
    a(f"v_and_b32 v{t1}, 1, v4")
    a(f"v_lshl_or_b32 v{vf}, v{t1}, 2, v{t0}")

def tr_lane192(a, vdst, v2g, t0, t1):
    a(f"v_lshrrev_b32 v{t0}, 2, v2")
    a(f"v_and_b32 v{t0}, 3, v{t0}")
    a(f"v_lshl_add_u32 v{t0}, v4, 3, v{t0}")
    a(f"v_mul_u32_u24 v{vdst}, 192, v{t0}")
    a(f"v_and_b32 v{t0}, 3, v2")
    a(f"v_and_b32 v{t1}, 1, v{t0}")
    a(f"v_lshl_add_u32 v{vdst}, v{t1}, 3, v{vdst}")
    a(f"v_lshrrev_b32 v{t0}, 1, v{t0}")
    a(f"v_lshl_add_u32 v{vdst}, v{t0}, 4, v{vdst}")
    a(f"v_and_b32 v{v2g}, 1, v4")
    a(f"v_lshlrev_b32 v{v2g}, 1, v{v2g}")

R_WDX = R_K
NPF = 0
def l2_prefetch(a):
    a("s_and_b32 s56, s2, 7")
    a("s_lshr_b32 s57, s2, 3")
    a("s_and_b32 s58, s56, 1")
    a("s_lshl_b32 s58, s58, 20")
    a("s_lshl_b32 s59, s57, 15")
    a("s_add_u32 s58, s58, s59")
    a(f"s_lshl_b32 s59, s{S_W}, 13")
    a("s_add_u32 s58, s58, s59")
    a("v_lshl_add_u32 v100, v2, 7, s58")
    a(f"buffer_load_dword v244, v100, s[{R_Q}:{R_Q+3}], 0 offen")
    a("s_mov_b32 s59, 10923")
    a("v_mul_u32_u24 v101, s59, v2")
    a("v_lshrrev_b32 v101, 16, v101")
    a("v_mul_u32_u24 v102, 6, v101")
    a("v_sub_u32 v102, v2, v102")
    a("s_lshl_b32 s58, s57, 4")
    a(f"s_lshl_b32 s59, s{S_W}, 2")
    a("s_add_u32 s58, s58, s59")
    a("v_add_u32 v101, s58, v101")
    a("s_movk_i32 s59, 2752")
    a("v_mul_u32_u24 v101, s59, v101")
    a("v_lshl_add_u32 v101, v102, 7, v101")
    a("s_lshr_b32 s58, s56, 1")
    a("s_mul_i32 s58, s58, 768")
    a("v_add_u32 v101, s58, v101")
    a("v_cmp_gt_u32 vcc, 24, v2")
    a("v_mov_b32 v102, 0x7ff00000")
    a.nop(1)
    a("v_cndmask_b32 v101, v102, v101, vcc")
    ptr_srd(a, 56, 48, D*F*2)
    a("buffer_load_dword v245, v101, s[56:59], 0 offen")
    ptr_srd(a, 56, 50, D*F*2)
    a("buffer_load_dword v246, v101, s[56:59], 0 offen")
    a(f"s_load_dwordx2 s[56:57], s[0:1], {KA_WD}")
    a(f"s_load_dwordx2 s[58:59], s[0:1], {KA_H}")
    a("s_lshr_b32 s40, s2, 3")
    a("s_mul_i32 s40, s40, 43")
    a(f"s_mul_i32 s41, s{S_W}, 11")
    a("s_add_u32 s40, s40, s41")
    a("v_lshrrev_b32 v103, 2, v2")
    a("v_add_u32 v103, s40, v103")
    a("v_lshlrev_b32 v103, 10, v103")
    a("v_and_b32 v104, 3, v2")
    a("v_lshl_add_u32 v103, v104, 7, v103")
    a("s_and_b32 s40, s2, 1")
    a("s_lshl_b32 s40, s40, 9")
    a("v_add_u32 v103, s40, v103")
    a("v_cmp_gt_u32 vcc, 44, v2")
    a("v_mov_b32 v104, 0x7ff00000")
    a("s_waitcnt lgkmcnt(0)")
    a("v_cndmask_b32 v103, v104, v103, vcc")
    a("s_mov_b32 s40, s56")
    a("s_mov_b32 s41, s57")
    a("s_mov_b32 s42, s58")
    a("s_mov_b32 s43, s59")
    ptr_srd(a, 56, 40, F*D*2)
    a("buffer_load_dword v247, v103, s[56:59], 0 offen")
    ptr_srd(a, 56, 42, D*S*2)
    a("s_lshl_b32 s40, s2, 13")
    a(f"s_lshl_b32 s41, s{S_W}, 11")
    a("s_add_u32 s40, s40, s41")
    a("v_lshl_add_u32 v105, v2, 7, s40")
    a("v_cmp_gt_u32 vcc, 16, v2")
    a("v_mov_b32 v104, 0x7ff00000")
    a.nop(1)
    a("v_cndmask_b32 v105, v104, v105, vcc")
    a("buffer_load_dword v248, v105, s[56:59], 0 offen")
    a(f"s_lshl_b32 s40, s{S_RB2}, 6")
    a(f"s_lshl_b32 s41, s{S_W}, 4")
    a("s_add_u32 s40, s40, s41")
    a("v_add_u32 v105, s40, v3")
    a("v_lshlrev_b32 v105, 10, v105")
    a(f"s_lshl_b32 s40, s{S_CB}, 7")
    a("v_add_u32 v105, s40, v105")
    a("v_cmp_gt_u32 vcc, 16, v2")
    a.nop(2)
    a("v_cndmask_b32 v105, v104, v105, vcc")
    a(f"buffer_load_dword v249, v105, s[{R_Q}:{R_Q+3}], 0 offen")

def path_X(a):
    ptr_srd(a, R_K, 42, S*D*2)
    ptr_srd(a, R_V, 44, S*D*2)
    ptr_srd(a, R_SK, 46, D*4*2)
    a("s_lshr_b32 s56, s2, 3")
    a("s_and_b32 s57, s2, 7")
    a("v_and_b32 v1, 7, v0")
    a("v_lshrrev_b32 v5, 3, v0")
    a("s_lshl_b32 s58, s56, 16")
    a("s_lshl_b32 s59, s57, 7")
    a("s_add_u32 s58, s58, s59")
    a("v_lshlrev_b32 v6, 11, v5")
    a("v_lshl_add_u32 v6, v1, 4, v6")
    a("v_add_u32 v6, s58, v6")
    for i in range(5):
        a(f"v_add_u32 v{44+i}, {(i-3)*1024 & 0xffffffff}, v6")
    for i in range(5):
        a(f"buffer_load_dwordx4 {vr(8+4*i,4)}, v{44+i}, s[{R_K}:{R_K+3}], 0 offen")
    a(f"buffer_load_dwordx4 v[28:31], v6, s[{R_V}:{R_V+3}], 0 offen")
    a(f"buffer_load_dwordx4 v[32:35], v6, s[{R_V}:{R_V+3}], 0 offen offset:1024")
    a("s_lshl_b32 s59, s57, 9")
    a("v_lshlrev_b32 v7, 6, v1")
    a("v_add_u32 v7, s59, v7")
    for i in range(4):
        a(f"buffer_load_dwordx4 {vr(52+4*i,4)}, v7, s[{R_SK}:{R_SK+3}], 0 offen offset:{16*i}")
    a("s_lshl_b32 s59, s2, 13")
    a(f"s_lshl_b32 s58, s{S_W}, 11")
    a("s_add_u32 s59, s59, s58")
    a("v_lshl_add_u32 v49, v2, 4, s59")
    a(f"buffer_load_dwordx4 v[36:39], v49, s[{R_Q}:{R_Q+3}], 0 offen")
    a(f"buffer_load_dwordx4 v[40:43], v49, s[{R_Q}:{R_Q+3}], 0 offen offset:1024")
    lab = a.newlabel("Lw0")
    a(f"s_or_b32 s56, s2, s{S_W}")
    a("s_cmp_lg_u32 s56, 0")
    a(f"s_cbranch_scc1 {lab}")
    a("s_memrealtime s[56:57]")
    a("s_waitcnt lgkmcnt(0)")
    a(f"s_or_b32 s{S_NONCE}, s56, 1")
    a("v_mov_b32 v50, 0")
    a(f"v_mov_b32 v51, s{S_NONCE}")
    a("s_mov_b64 exec, 1")
    a(f"buffer_store_dword v51, v50, s[{R_DBG}:{R_DBG+3}], 0 offen sc1")
    a("s_mov_b64 exec, -1")
    a.label(lab)
    S_WS2, S_WF = S_A, S_B
    a(f"s_and_b32 s{S_WS2}, s{S_W}, 1")
    a(f"s_lshr_b32 s{S_WF}, s{S_W}, 1")
    VRQ = [[212 + 2*s + ks for ks in range(2)] for s in range(3)]
    VRW = [[[218 + 6*s + 3*gu + t for t in range(3)] for gu in range(2)] for s in range(3)]
    a("v_lshrrev_b32 v6, 1, v3")
    a(f"s_lshl_b32 s56, s{S_WS2}, 13")
    a(f"s_add_u32 s56, s56, {F1_QBASE}")
    for ks in range(2):
        a(f"v_add_u32 v7, {4*ks}, v4")
        a("v_xor_b32 v7, v7, v6")
        a("v_lshlrev_b32 v7, 4, v7")
        a("v_lshl_add_u32 v7, v3, 7, v7")
        a(f"v_add_u32 v{VRQ[0][ks]}, s56, v7")
        for s in (1, 2):
            a(f"v_add_u32 v{VRQ[s][ks]}, {s*F1_QSLOT}, v{VRQ[0][ks]}")
    tr_lane192(a, 6, 7, 50, 51)
    a(f"s_mul_i32 s56, s{S_WF}, 6")
    for t in range(3):
        a(f"s_add_u32 s57, s56, {2*t}")
        a("v_xor_b32 v50, s57, v7")
        a(f"v_lshl_add_u32 v{VRW[0][0][t]}, v50, 4, v6")
        for s in range(3):
            for gu in range(2):
                if s == 0 and gu == 0: continue
                a(f"v_add_u32 v{VRW[s][gu][t]}, {s*F1_WSLOT + gu*12288}, v{VRW[0][0][t]}")
    ACC = 116
    FS = [8, 48]
    for i in range(96):
        a(f"v_mov_b32 v{ACC+i}, 0")
    a("v_lshrrev_b32 v88, 2, v5")
    a("v_sub_u32 v88, 7, v88")
    a("v_xor_b32 v88, v88, v1")
    a("v_lshlrev_b32 v88, 4, v88")
    a("v_and_b32 v89, 3, v5")
    a("v_lshlrev_b32 v89, 2, v89")
    a("v_sub_u32 v89, 12, v89")
    a("v_add_u32 v88, v88, v89")
    a("v_lshl_add_u32 v88, v1, 10, v88")
    a(f"v_add_u32 v88, {L_CONV}, v88")
    a("s_mov_b32 s40, 0x05040100")
    a("s_mov_b32 s41, 0x07060302")
    stamp(a)
    a(f"s_waitcnt vmcnt({2 + NPF})")
    stamp(a)
    for row in range(2):
        R = 90 + 8*row
        k3, k2, k1, k0 = 20 + 4*row, 16 + 4*row, 12 + 4*row, 8 + 4*row
        for m in range(4):
            for half in range(2):
                e = 2*m + half
                sel = "s40" if half == 0 else "s41"
                a(f"v_perm_b32 v{68+2*e}, v{k2+m}, v{k3+m}, {sel}")
                a(f"v_perm_b32 v{69+2*e}, v{k0+m}, v{k1+m}, {sel}")
        for e in range(8):
            a(f"v_dot2_f32_bf16 v{R+e}, v{68+2*e}, v{52+2*e}, 0")
        for e in range(8):
            a(f"v_dot2_f32_bf16 v{R+e}, v{69+2*e}, v{53+2*e}, v{R+e}")
        V = 28 + 4*row
        for m in range(4):
            a(f"v_lshlrev_b32 v{68+2*m}, 16, v{V+m}")
            a(f"v_and_b32 v{69+2*m}, 0xffff0000, v{V+m}")
        for e in range(8):
            a(f"v_mul_f32 v{R+e}, v{R+e}, v{68+e}")
    for e in range(8):
        a(f"v_cvt_pk_bf16_f32 v{68+e}, v{98+e}, v{90+e}")
    for e in range(8):
        a(f"ds_write_b32 v88, v{68+e} offset:{e*128}")
    a(f"s_waitcnt vmcnt({NPF})")
    a("v_mov_b32 v76, 0x3f803f80")
    for row in range(2):
        Q = 36 + 4*row
        a("v_mov_b32 v77, 0")
        for m in range(4):
            a(f"v_dot2_f32_bf16 v77, v{Q+m}, v76, v77")
        a.nop(3)
        wave_sum64(a, 77, 56)
        a("v_mul_f32 v77, 0x3b000000, v77")
        for m in range(4):
            a(f"v_lshlrev_b32 v{78+2*m}, 16, v{Q+m}")
            a(f"v_and_b32 v{79+2*m}, 0xffff0000, v{Q+m}")
        for e in range(8):
            a(f"v_sub_f32 v{78+e}, v{78+e}, v77")
        a("v_mul_f32 v86, v78, v78")
        for e in range(1, 8):
            a(f"v_fmac_f32 v86, v{78+e}, v{78+e}")
        wave_sum64(a, 86, 56)
        a(f"v_mov_b32 v{107+2*row}, 0x3727c5ac")
        a(f"v_fmac_f32 v{107+2*row}, 0x3b000000, v86")
        a(f"v_rsq_f32 v{107+2*row}, v{107+2*row}")
        a(f"v_mov_b32 v{106+2*row}, v77")
    a("s_lshl_b32 s59, s2, 6")
    a(f"s_lshl_b32 s58, s{S_W}, 4")
    a("s_add_u32 s59, s59, s58")
    a(f"s_add_u32 s59, s59, {WS_STATS}")
    a("v_mov_b32 v110, s59")
    a("s_mov_b64 exec, 1")
    a(f"buffer_store_dwordx4 v[106:109], v110, s[{R_WS}:{R_WS+3}], 0 offen sc1")
    a("s_mov_b64 exec, -1")
    lab = a.newlabel("Lnn")
    a(f"s_cmp_lg_u32 s{S_W}, 0")
    a(f"s_cbranch_scc1 {lab}")
    a(f"v_mov_b32 v111, {L_NON}")
    for i in range(4): a(f"v_mov_b32 v{112+i}, 0")
    a("ds_write_b128 v111, v[112:115] offset:16")
    a("ds_write_b128 v111, v[112:115] offset:32")
    a("ds_write_b128 v111, v[112:115] offset:48")
    a("v_mov_b32 v111, 0")
    a(f"buffer_load_dword v243, v111, s[{R_DBG}:{R_DBG+3}], 0 offen sc1")
    a.label(lab)
    a("s_waitcnt lgkmcnt(0)")
    stamp(a)
    a("s_barrier")
    stamp(a)
    a("v_lshrrev_b32 v5, 3, v2")
    a("v_and_b32 v1, 7, v2")
    a(f"s_lshl_b32 s56, s{S_W}, 4")
    a("v_add_u32 v5, s56, v5")
    for e in range(2):
        a(f"v_add_u32 v6, {8*e}, v5")
        a("v_lshrrev_b32 v7, 3, v6")
        a("v_xor_b32 v7, v7, v1")
        a("v_lshlrev_b32 v7, 4, v7")
        a("v_lshl_add_u32 v7, v6, 7, v7")
        a(f"v_add_u32 v7, {L_CONV}, v7")
        a(f"ds_read_b128 {vr(88+4*e,4)}, v7")
    def acc(st, t, gu): return ACC + ((st*3 + t)*2 + gu)*4
    def fq(s, st): return FS[s] + 4*st
    def fw(s, gu, t): return FS[s] + 16 + (gu*3 + t)*4
    def reads(slot, ks, s):
        r = []
        for t in range(3):
            for gu in range(2):
                for hf in range(2):
                    r.append(f"ds_read_b64_tr_b16 {vr(fw(s, gu, t) + 2*hf, 2)}, v{VRW[slot][gu][t]} offset:{(32*ks + 4*hf)*192}")
        q = [f"ds_read_b128 {vr(fq(s, st), 4)}, v{VRQ[slot][ks]} offset:{st*2048}" for st in range(4)]
        return q + r
    for x in reads(0, 0, 0): a(x)
    a("s_lshr_b32 s56, s2, 3")
    a("s_and_b32 s57, s2, 7")
    a("s_lshl_b32 s59, s57, 18")
    a("s_lshl_b32 s58, s56, 7")
    a("s_sub_u32 s59, s59, s58")
    a(f"s_add_u32 s59, s59, {WS_KVT + 1984*2}")
    a("v_lshlrev_b32 v96, 12, v5")
    a("v_lshl_add_u32 v96, v1, 4, v96")
    a("v_add_u32 v96, s59, v96")
    a("v_add_u32 v97, 32768, v96")
    a("s_waitcnt lgkmcnt(0)")
    a(f"buffer_store_dwordx4 v[88:91], v96, s[{R_WS}:{R_WS+3}], 0 offen sc1")
    a(f"buffer_store_dwordx4 v[92:95], v97, s[{R_WS}:{R_WS+3}], 0 offen sc1")
    a(f"s_load_dwordx2 s[56:57], s[0:1], {KA_WD}")
    a(f"s_load_dwordx2 s[58:59], s[0:1], {KA_H}")
    a("s_lshr_b32 s40, s2, 3")
    a("s_mul_i32 s40, s40, 43")
    a(f"s_mul_i32 s41, s{S_W}, 11")
    a("s_add_u32 s40, s40, s41")
    a("v_lshrrev_b32 v244, 2, v2")
    a("v_add_u32 v244, s40, v244")
    a("v_lshlrev_b32 v244, 10, v244")
    a("v_and_b32 v245, 3, v2")
    a("v_lshl_add_u32 v244, v245, 7, v244")
    a("s_and_b32 s40, s2, 1")
    a("s_lshl_b32 s40, s40, 9")
    a("v_add_u32 v244, s40, v244")
    a("v_cmp_gt_u32 vcc, 44, v2")
    a("v_mov_b32 v246, 0x7ff00000")
    a("s_lshl_b32 s40, s2, 13")
    a(f"s_lshl_b32 s41, s{S_W}, 11")
    a("s_add_u32 s40, s40, s41")
    a("v_cndmask_b32 v244, v246, v244, vcc")
    a("v_lshl_add_u32 v245, v2, 7, s40")
    a("v_cmp_gt_u32 vcc, 16, v2")
    a("s_waitcnt lgkmcnt(0)")
    a.nop(1)
    a("v_cndmask_b32 v245, v246, v245, vcc")
    ptr_srd(a, R_WDX, 56, F*D*2)
    ptr_srd(a, R_V, 58, D*S*2)
    def mfmas(s):
        m = []
        for t in range(3):
            for gu in range(2):
                for st in range(4):
                    m.append(f"v_mfma_f32_16x16x32_bf16 {vr(acc(st,t,gu),4)}, {vr(fw(s,gu,t),4)}, {vr(fq(s,st),4)}, {vr(acc(st,t,gu),4)}")
        return m
    def part(s_cur, nxt):
        a("s_waitcnt lgkmcnt(0)")
        interleave(a, mfmas(s_cur), spread(24, nxt, 0, 1))
    a(f"s_mov_b32 s{S_JJ}, 0")
    a.label("Lx_f1_loop")
    for u in range(3):
        part(0, reads(u, 1, 1))
        a("s_waitcnt lgkmcnt(0)")
        if u == 1:
            a("s_waitcnt vmcnt(0)")
            lab = a.newlabel("Lxn")
            a(f"s_or_b32 s56, s{S_W}, s{S_JJ}")
            a("s_cmp_lg_u32 s56, 0")
            a(f"s_cbranch_scc1 {lab}")
            a(f"v_mov_b32 v88, {L_NON}")
            a(f"s_cmp_lg_u32 s{S_NONCE}, 0")
            a(f"v_mov_b32 v89, s{S_NONCE}")
            l2 = a.newlabel("Lxn")
            a(f"s_cbranch_scc1 {l2}")
            a("v_mov_b32 v89, v243")
            a.label(l2)
            a("ds_write_b32 v88, v89")
            a("s_waitcnt lgkmcnt(0)")
            a.label(lab)
            lab = a.newlabel("Lxp")
            a(f"s_cmp_lg_u32 s{S_JJ}, 1")
            a(f"s_cbranch_scc1 {lab}")
            a(f"buffer_load_dword v247, v244, s[{R_WDX}:{R_WDX+3}], 0 offen")
            a(f"buffer_load_dword v248, v245, s[{R_V}:{R_V+3}], 0 offen")
            a.label(lab)
        a("s_barrier")
        part(1, reads((u + 1) % 3, 0, 0))
        if u == 1:
            a(f"s_cmp_eq_u32 s{S_JJ}, 2")
            a("s_cbranch_scc1 Lx_f1_done")
    a(f"s_add_u32 s{S_JJ}, s{S_JJ}, 1")
    a("s_branch Lx_f1_loop")
    a.label("Lx_f1_done")
    a("s_waitcnt lgkmcnt(0)")
    stamp(a)
    CSD, STR = 8, 32
    a("s_setprio 3")
    a(f"v_mov_b32 v64, {L_NON}")
    a("ds_read_b32 v65, v64")
    a(f"s_mul_i32 s56, s{S_WF}, 192")
    a(f"s_add_u32 s56, s56, {L_CS}")
    a("v_lshl_add_u32 v6, v4, 4, s56")
    for gu in range(2):
        for t in range(3):
            a(f"ds_read_b128 {vr(CSD + (gu*3+t)*4, 4)}, v6 offset:{gu*384 + t*64}")
    a(f"s_lshl_b32 s56, s{S_WS2}, 9")
    a(f"s_add_u32 s56, s56, {L_ST}")
    a("v_lshl_add_u32 v6, v3, 3, s56")
    for st in range(4):
        a(f"ds_read_b64 {vr(STR+2*st,2)}, v6 offset:{st*128}")
    c1 = 2.0 * (2.0 / 3.141592653589793) ** 0.5 * 1.4426950408889634
    c2 = c1 * 0.044715
    a(f"v_mov_b32 v40, 0x{f2u(-c1):08x}")
    a(f"v_mov_b32 v41, 0x{f2u(-c2):08x}")
    a(f"s_lshl_b32 s56, s{S_RB}, 1")
    a(f"s_add_u32 s56, s56, s{S_WS2}")
    a("s_mov_b32 s58, s56")
    a("s_mul_i32 s56, s56, 43")
    a(f"s_mul_i32 s57, s{S_SL}, 3")
    a("s_add_u32 s56, s56, s57")
    a("s_lshl_b32 s56, s56, 12")
    a(f"s_add_u32 s56, s56, {WS_HF}")
    a("v_and_b32 v42, 1, v4")
    a("v_lshlrev_b32 v42, 10, v42")
    a("v_lshrrev_b32 v43, 1, v4")
    a("v_lshl_add_u32 v42, v43, 8, v42")
    a("v_lshl_add_u32 v42, v3, 4, v42")
    a("v_add_u32 v42, s56, v42")
    S_FH = 60
    a("s_lshl_b32 s58, s58, 8")
    a(f"s_lshl_b32 s57, s{S_SL}, 1")
    a(f"s_add_u32 s57, s57, s{S_WF}")
    a("s_lshl_b32 s57, s57, 2")
    a("s_add_u32 s58, s58, s57")
    a(f"s_add_u32 s{S_FH}, s58, {WS_FLAG + FL_H*128}")
    a("s_waitcnt lgkmcnt(0)")
    a(f"v_readfirstlane_b32 s{S_NONCE}, v65")
    T = 44
    for st in range(4):
        a(f"v_rcp_f32 v{64+st}, v{STR+2*st+1}")
        a(f"v_sub_f32 v{STR+2*st}, 0, v{STR+2*st}")
    for t in range(3):
        a(f"s_mul_i32 s56, s{S_WF}, 3")
        a(f"s_add_u32 s56, s56, {t}")
        a("s_lshr_b32 s57, s56, 1")
        a("s_and_b32 s56, s56, 1")
        a("s_lshl_b32 s56, s56, 9")
        a("s_lshl_b32 s59, s57, 12")
        a("s_add_u32 s56, s56, s59")
        a(f"s_mul_i32 s59, s{S_SL}, 3")
        a("s_add_u32 s59, s59, s57")
        a("s_cmp_lt_u32 s59, 43")
        a("s_cselect_b32 s56, s56, 0x7ff00000")
        for p in range(2):
            O = 48 + 4*((t*2 + p) % 4)
            for sti in range(2):
                st = 2*p + sti
                nm, rs, istd = STR + 2*st, STR + 2*st + 1, 64 + st
                g0, u0 = acc(st, t, 0), acc(st, t, 1)
                cg, cu = CSD + t*4, CSD + (3 + t)*4
                for j in range(4): a(f"v_fmac_f32 v{g0+j}, v{nm}, v{cg+j}")
                for j in range(4): a(f"v_fmac_f32 v{u0+j}, v{nm}, v{cu+j}")
                for j in range(4): a(f"v_mul_f32 v{g0+j}, v{rs}, v{g0+j}")
                for j in range(4): a(f"v_mul_f32 v{T+j}, v{g0+j}, v{g0+j}")
                for j in range(4): a(f"v_fma_f32 v{T+j}, v{T+j}, v41, v40")
                for j in range(4): a(f"v_mul_f32 v{T+j}, v{T+j}, v{g0+j}")
                for j in range(4): a(f"v_exp_f32 v{T+j}, v{T+j}")
                for j in range(4): a(f"v_mul_f32 v{u0+j}, v{u0+j}, v{g0+j}")
                for j in range(4): a(f"v_fma_f32 v{T+j}, v{T+j}, v{istd}, v{istd}")
                for j in range(4): a(f"v_rcp_f32 v{T+j}, v{T+j}")
                a.nop(1)
                for j in range(4): a(f"v_mul_f32 v{u0+j}, v{u0+j}, v{T+j}")
                a(f"v_cvt_pk_bf16_f32 v{O+2*sti}, v{u0}, v{u0+1}")
                a(f"v_cvt_pk_bf16_f32 v{O+2*sti+1}, v{u0+2}, v{u0+3}")
            a.nop(2)
            a(f"v_permlane16_swap_b32 v{O}, v{O+2}")
            a(f"v_permlane16_swap_b32 v{O+1}, v{O+3}")
            a(f"buffer_store_dwordx4 {vr(O,4)}, v42, s[{R_WS}:{R_WS+3}], s56 offen offset:{p*2048} sc1")
    stamp(a)
    a("s_waitcnt vmcnt(0)")
    publish(a, 68, [S_FH])
    stamp(a)
    a("s_setprio 0")
    a("s_barrier")
    S_DH, S_KH = S_A, S_B
    a(f"s_and_b32 s{S_DH}, s{S_W}, 1")
    a(f"s_lshr_b32 s{S_KH}, s{S_W}, 1")
    tr_lane128(a, 7, 6, 16, 19)
    VRA = [20, 21]
    for e in range(2):
        a(f"s_lshl_b32 s57, s{S_DH}, 2")
        a(f"s_add_u32 s57, s57, {2*e}")
        a("v_xor_b32 v16, s57, v6")
        a(f"v_lshl_add_u32 v{VRA[e]}, v16, 4, v7")
    a(f"s_mul_i32 s56, s{S_KH}, {NRES*4096}")
    a(f"v_add_u32 v22, s56, v{VRA[0]}")
    a(f"v_add_u32 v23, s56, v{VRA[1]}")
    WREG = 116
    for i in range(NRES):
        for dt in range(2):
            for hf in range(2):
                a(f"ds_read_b64_tr_b16 {vr(WREG + (i*2+dt)*4 + 2*hf, 2)}, v{22+dt} offset:{i*4096 + hf*512}")
        if i % 3 == 2:
            a("s_waitcnt lgkmcnt(4)")
    a("v_lshrrev_b32 v5, 3, v2")
    a("v_and_b32 v7, 7, v2")
    a("v_and_b32 v6, 2, v5")
    a(f"s_and_b32 s56, s{S_W}, 1")
    a("s_lshl_b32 s56, s56, 2")
    a("v_or_b32 v6, s56, v6")
    a("v_xor_b32 v6, v6, v7")
    a("v_lshlrev_b32 v6, 4, v6")
    a("v_lshl_add_u32 v26, v5, 10, v6")
    a(f"s_lshl_b32 s56, s{S_CB}, 7")
    a(f"s_lshl_b32 s57, s{S_W}, 13")
    a("s_add_u32 s56, s56, s57")
    a("v_add_u32 v26, s56, v26")
    a(f"s_lshr_b32 s47, s{S_W}, 1")
    a(f"s_and_b32 s48, s{S_W}, 1")
    a("s_mul_i32 s50, s47, 22")
    a("s_add_u32 s50, s50, s48")
    a("s_lshl_b32 s51, s47, 13")
    a("s_lshl_b32 s52, s48, 12")
    a("s_add_u32 s51, s51, s52")
    a(f"s_add_u32 s51, s51, {F2_HB}")
    a(f"s_mul_i32 s53, s{S_RB2}, 43")
    a("s_add_u32 s53, s53, s50")
    a("s_lshl_b32 s53, s53, 12")
    a(f"s_add_u32 s53, s53, {WS_HF}")
    a("v_lshlrev_b32 v27, 4, v2")
    a(f"s_lshl_b32 s56, s{S_RB2}, 8")
    a(f"s_add_u32 s56, s56, {WS_FLAG + FL_H*128}")
    a("v_cmp_gt_u32 vcc, 30, v2")
    a("v_mov_b32 v6, 0")
    a.nop(1)
    a("v_cndmask_b32 v6, v6, v2, vcc")
    a("v_lshl_add_u32 v28, v6, 2, s56")
    a(f"s_lshl_b32 s56, s{S_KH}, 13")
    a(f"s_add_u32 s56, s56, {F2_HB}")
    a("v_lshl_add_u32 v30, v2, 4, s56")
    a(f"v_add_u32 v31, {3*F2_SLOT}, v30")
    a(f"s_mul_i32 s56, s{S_KH}, {7*4096}")
    a(f"s_add_u32 s56, s56, {F2_LW}")
    a(f"v_add_u32 v24, s56, v{VRA[0]}")
    a(f"v_add_u32 v25, s56, v{VRA[1]}")
    a(f"buffer_load_dword v29, v28, s[{R_WS}:{R_WS+3}], 0 offen sc1")
    a("s_waitcnt lgkmcnt(0)")
    a(f"s_lshl_b32 s56, s{S_W}, 2")
    a(f"s_add_u32 s56, s56, {L_CF + 16}")
    a("v_mov_b32 v8, s56")
    a("v_mov_b32 v9, 1")
    a("ds_write_b32 v8, v9")
    a(f"v_mov_b32 v8, {L_CF + 16}")
    lab = a.newlabel("Lxs"); out = a.newlabel("Lxs")
    a("s_mov_b32 s40, 0")
    a.label(lab)
    a("ds_read_b128 v[12:15], v8")
    a("s_add_u32 s40, s40, 1")
    a("s_waitcnt lgkmcnt(0)")
    a("v_and_b32 v12, v12, v13")
    a("v_and_b32 v14, v14, v15")
    a("v_and_b32 v12, v12, v14")
    a.nop(1)
    a("v_readfirstlane_b32 s41, v12")
    a(f"s_cmp_ge_u32 s40, {POLL_MAX*10}")
    a(f"s_cbranch_scc1 {out}")
    a("s_cmp_eq_u32 s41, 0")
    a(f"s_cbranch_scc1 {lab}")
    a.label(out)
    stamp(a)
    a("s_waitcnt vmcnt(0)")
    lab = a.newlabel("Lxh")
    a(f"v_cmp_ne_u32 vcc, s{S_NONCE}, v29")
    a(f"s_cbranch_vccz {lab}")
    poll(a, 28, 29)
    a.label(lab)
    stamp(a)
    for I in range(4):
        for st in range(4):
            a(f"s_add_u32 m0, s51, {I*F2_SLOT + st*1024}")
            a(f"s_add_u32 s56, s53, {I*8192 + st*1024}")
            a(f"buffer_load_dwordx4 v27, s[{R_WS}:{R_WS+3}], s56 offen lds")
    for q in range(14):
        kh, m = q // 7, q % 7
        ks = 22*kh + NRES + m
        a(f"s_lshl_b32 s57, s{S_W}, 10")
        a(f"s_add_u32 m0, s57, {F2_LW + q*4096}")
        a(f"s_mov_b32 s56, {ks*32768}")
        a(f"buffer_load_dwordx4 v26, s[{R_WDX}:{R_WDX+3}], s56 offen lds")
    a(f"s_and_b32 s56, s{S_CB}, 3")
    a("s_mul_i32 s56, s56, 344")
    a(f"s_mul_i32 s57, s{S_W}, 86")
    a("s_add_u32 s56, s56, s57")
    a("s_lshl_b32 s56, s56, 7")
    a(f"s_mul_i32 s57, s{S_RB2}, {43*4096}")
    a("s_add_u32 s56, s56, s57")
    a(f"s_add_u32 s56, s56, {WS_HF}")
    a("v_lshl_add_u32 v32, v2, 7, s56")
    a("v_cmp_gt_u32 vcc, 43, v2")
    a("v_mov_b32 v33, 0x7ff00000")
    a.nop(1)
    a("v_cndmask_b32 v32, v33, v32, vcc")
    a(f"buffer_load_dword v34, v32, s[{R_WS}:{R_WS+3}], 0 offen")
    a(f"buffer_load_dword v35, v32, s[{R_WS}:{R_WS+3}], 0 offen offset:{0}") if False else None
    a(f"v_add_u32 v33, {43*128}, v32")
    a(f"buffer_load_dword v35, v33, s[{R_WS}:{R_WS+3}], 0 offen")
    final_loads(a)
    ACC2 = 36
    def acc2(dt, st): return ACC2 + (dt*4 + st)*4
    FB = [68, 84, 100]
    def reads2(p):
        I, e = p // 2, p % 2
        if p > 21: return []
        slot = I % F2_NSLOT
        s = p % 3
        vb, off = (30, slot*F2_SLOT) if slot < 3 else (31, (slot-3)*F2_SLOT)
        r = [f"ds_read_b128 {vr(FB[s]+4*st,4)}, v{vb} offset:{off + e*4096 + st*1024}" for st in range(4)]
        if p >= NRES:
            for dt in range(2):
                for hf in range(2):
                    r.append(f"ds_read_b64_tr_b16 {vr(FA2[p % 3]+4*dt+2*hf,2)}, v{24+dt} offset:{(p-NRES)*4096 + hf*512}")
        return r
    FA2 = [8, 244, 16]
    NI = 11
    a("s_waitcnt vmcnt(26)")
    a("s_barrier")
    stamp(a)
    for x in reads2(0): a(x)
    for x in reads2(1): a(x)
    prev_n = len(reads2(1))
    for I in range(NI):
        if 1 <= I <= 7:
            if I <= 2: a(f"s_waitcnt vmcnt({4*(2-I) + 18})")
            if I == 6: a("s_waitcnt vmcnt(0)")
            a("s_barrier")
        for e in range(2):
            p = 2*I + e
            nxt = reads2(p + 2)
            a(f"s_waitcnt lgkmcnt({prev_n})")
            lab = None
            if p == 21:
                lab = a.newlabel("Lg")
                a(f"s_cmp_eq_u32 s{S_KH}, 1")
                a(f"s_cbranch_scc1 {lab}")
            m = []
            for dt in range(2):
                areg = (WREG + (p*2+dt)*4) if p < NRES else (FA2[p % 3] + 4*dt)
                for st in range(4):
                    c = "0" if p == 0 else vr(acc2(dt, st), 4)
                    m.append(f"v_mfma_f32_16x16x32_bf16 {vr(acc2(dt,st),4)}, {vr(areg,4)}, {vr(FB[p % 3]+4*st,4)}, {c}")
            interleave(a, m, spread(8, nxt, 0, 1))
            if lab: a.label(lab)
            prev_n = len(nxt)
    stamp(a)
    a.nop(8)
    a("s_barrier")
    a(f"s_mul_i32 s56, s{S_KH}, {64*F2_PP}")
    a(f"s_lshl_b32 s57, s{S_DH}, 7")
    a("s_add_u32 s56, s56, s57")
    a(f"v_mul_u32_u24 v6, {F2_PP}, v3")
    a("v_lshl_add_u32 v6, v4, 4, v6")
    a("v_add_u32 v6, s56, v6")
    for dt in range(2):
        for st in range(4):
            a(f"ds_write_b128 v6, {vr(acc2(dt,st),4)} offset:{st*16*F2_PP + dt*64}")
    a("s_branch Lfinal")
def cap(a, fn):
    t = A(); t.uid = a.uid
    fn(t)
    a.uid = t.uid
    return [x.strip() for x in t.l]

def lds_flag_wait(a, vaddr, vt, val, b128=False):
    lab = a.newlabel("Lcf"); out = a.newlabel("Lcf")
    a("s_mov_b32 s40, 0")
    a.label(lab)
    if b128:
        a(f"ds_read_b128 {vr(vt,4)}, v{vaddr}")
    else:
        a(f"ds_read_b32 v{vt}, v{vaddr}")
    a("s_add_u32 s40, s40, 1")
    a("s_waitcnt lgkmcnt(0)")
    if b128:
        a(f"v_min_u32 v{vt}, v{vt}, v{vt+1}")
        a(f"v_min_u32 v{vt+2}, v{vt+2}, v{vt+3}")
        a(f"v_min_u32 v{vt}, v{vt}, v{vt+2}")
        a.nop(1)
    a(f"v_readfirstlane_b32 s41, v{vt}")
    a(f"s_cmp_ge_u32 s40, {POLL_MAX*10}")
    a(f"s_cbranch_scc1 {out}")
    a(f"s_cmp_lt_u32 s41, {val}")
    a(f"s_cbranch_scc1 {lab}")
    a.label(out)

def path_Y(a):
    a.label("LY")
    asmlib.Stamps.n = 1
    S_Y = S_A
    a(f"s_sub_u32 s{S_Y}, s{S_W}, 4")
    a(f"s_cmp_lt_u32 s{S_Y}, 2")
    a("s_cselect_b32 s56, s48, s50")
    a("s_cselect_b32 s57, s49, s51")
    ptr_srd(a, R_W, 56, D*F*2)
    VQ = [84, 85, 86, 87]; VW = [88, 89, 90, 91, 92, 93]
    a("v_lshrrev_b32 v5, 3, v2")
    a("v_and_b32 v7, 7, v2")
    a(f"s_lshl_b32 s56, s{S_RB}, 17")
    a(f"s_lshl_b32 s57, s{S_Y}, 15")
    a("s_add_u32 s56, s56, s57")
    S_QD, S_WDD, S_J0 = 44, 45, 46
    a(f"s_lshl_b32 s{S_QD}, s{S_Y}, 12")
    a(f"s_add_u32 s{S_QD}, s{S_QD}, {F1_QBASE}")
    a(f"s_lshr_b32 s{S_J0}, s{S_RB}, 1")
    def dma_src(Jn):
        a(f"s_add_u32 s47, s{S_J0}, {Jn}")
        a("s_and_b32 s47, s47, 7")
        a("s_lshl_b32 s48, s47, 7")
        a(f"s_mul_i32 s49, s47, {64*2752}")
    class Fill:
        def __init__(s, lines, n):
            s.l = list(lines); s.per = (len(s.l) + n - 1) // n if n else 0
        def step(s):
            for x in s.l[:s.per]: a(x)
            s.l = s.l[s.per:]
        def flush(s):
            for x in s.l: a(x)
            s.l = []
    def dma_q(Jn, f=None):
        slot = Jn % 3
        for e in range(4):
            a(f"s_add_u32 m0, s{S_QD}, {slot*F1_QSLOT + e*1024}")
            a.nop(1)
            a(f"buffer_load_dwordx4 v{VQ[e]}, s[{R_Q}:{R_Q+3}], s48 offen lds")
            if f: f.step()
    def dma_w(Jn, f=None):
        slot = Jn % 3
        for e in range(6):
            a(f"s_add_u32 m0, s{S_WDD}, {slot*F1_WSLOT + e*1024}")
            a.nop(1)
            a(f"buffer_load_dwordx4 v{VW[e]}, s[{R_W}:{R_W+3}], s49 offen lds")
            if f: f.step()
    def dma(Jn, fill=()):
        f = Fill(fill, 10)
        dma_src(Jn); dma_q(Jn, f); dma_w(Jn, f)
        f.flush()
    dma_src(0)
    for e in range(4):
        a(f"v_add_u32 v6, {4*e}, v4")
        a("v_and_b32 v6, 7, v6")
        a("v_xor_b32 v6, v6, v7")
        a("v_lshlrev_b32 v6, 4, v6")
        a("v_lshl_add_u32 v6, v5, 10, v6")
        a(f"v_add_u32 v{VQ[e]}, s56, v6")
        if e: a(f"v_add_u32 v{VQ[e]}, {8192*e}, v{VQ[e]}")
        a(f"s_add_u32 m0, s{S_QD}, {e*1024}")
        a.nop(1)
        a(f"buffer_load_dwordx4 v{VQ[e]}, s[{R_Q}:{R_Q+3}], s48 offen lds")
    a(f"s_lshr_b32 s56, s{S_Y}, 1")
    a(f"s_mul_i32 s{S_WDD}, s56, 12288")
    a(f"s_and_b32 s56, s{S_Y}, 1")
    a("s_mul_i32 s56, s56, 6144")
    a(f"s_add_u32 s{S_WDD}, s{S_WDD}, s56")
    a(f"s_and_b32 s56, s{S_Y}, 1")
    a("s_mul_i32 s56, s56, 384")
    a(f"s_mul_i32 s57, s{S_SL}, 192")
    a("s_mov_b32 s58, 43691")
    a("s_movk_i32 s59, 2752")
    for e in range(6):
        a("v_add_u32 v6, s56, v2")
        if e: a(f"v_add_u32 v6, {64*e}, v6")
        a("v_mul_u32_u24 v7, s58, v6")
        a("v_lshrrev_b32 v7, 19, v7")
        a("v_mul_u32_u24 v8, 12, v7")
        a("v_sub_u32 v6, v6, v8")
        a("v_lshrrev_b32 v8, 2, v7")
        a("v_and_b32 v8, 2, v8")
        a("v_xor_b32 v6, v6, v8")
        a("v_lshlrev_b32 v6, 4, v6")
        a("v_mul_u32_u24 v7, s59, v7")
        a("v_add_u32 v6, v6, v7")
        a(f"v_add_u32 v{VW[e]}, s57, v6")
        a(f"s_add_u32 m0, s{S_WDD}, {e*1024}")
        a.nop(1)
        a(f"buffer_load_dwordx4 v{VW[e]}, s[{R_W}:{R_W+3}], s49 offen lds")
    stamp(a)
    def f_colsum_addr(t_):
        tr_lane192(t_, 6, 7, 8, 9)
        t_(f"s_and_b32 s56, s{S_Y}, 1")
        t_("s_mul_i32 s56, s56, 6")
        t_(f"s_lshr_b32 s57, s{S_Y}, 1")
        t_("s_mul_i32 s57, s57, 12288")
        t_(f"s_and_b32 s58, s{S_RB}, 1")
        t_(f"s_mul_i32 s58, s58, {32*192}")
        t_("s_add_u32 s57, s57, s58")
        for t in range(3):
            t_(f"s_add_u32 s59, s56, {2*t}")
            t_("v_xor_b32 v8, s59, v7")
            t_(f"v_lshl_add_u32 v{104+t}, v8, 4, v6")
            t_(f"v_add_u32 v{104+t}, s57, v{104+t}")
        t_(f"s_lshl_b32 s56, s{S_SL}, 4")
        t_(f"s_add_u32 s56, s56, s{S_RB}")
        t_("s_mul_i32 s56, s56, 768")
        t_(f"s_mul_i32 s57, s{S_Y}, 192")
        t_("s_add_u32 s56, s56, s57")
        t_(f"s_add_u32 s56, s56, {WS_CSP}")
        t_("v_lshl_add_u32 v40, v4, 4, s56")
        for i in range(4): t_(f"v_mov_b32 v{24+i}, 0x3f803f80")
    dma(1, cap(a, f_colsum_addr))
    a(f"s_load_dwordx2 s[56:57], s[0:1], {KA_H}")
    a(f"s_load_dwordx2 s[40:41], s[0:1], {KA_WD}")
    a(f"s_load_dwordx2 s[58:59], s[0:1], {KA_DD}")
    a("s_waitcnt vmcnt(10)")
    a("s_barrier")
    stamp(a)
    for t in range(3):
        for hf in range(2):
            a(f"ds_read_b64_tr_b16 {vr(12 + 4*t + 2*hf, 2)}, v{104+t} offset:{4*hf*192}")
    dma(2)
    a("s_waitcnt lgkmcnt(0)")
    ptr_srd(a, R_H, 56, D*S*2)
    ptr_srd(a, R_WD, 40, F*D*2)
    a("s_lshl_b32 s56, s2, 2")
    a(f"s_load_dword s{S_DD}, s[58:59], s56")
    for t in range(3):
        a(f"v_mfma_f32_16x16x32_bf16 {vr(28 + 4*t, 4)}, {vr(12+4*t,4)}, v[24:27], 0")
    a("s_waitcnt vmcnt(10)")
    a("s_barrier")
    a.nop(4)
    a("s_mov_b32 s56, 0x00010001")
    a("s_mov_b32 exec_lo, s56")
    a("s_mov_b32 exec_hi, s56")
    for t in range(3):
        a(f"buffer_store_dwordx4 {vr(28+4*t,4)}, v40, s[{R_WS}:{R_WS+3}], 0 offen offset:{t*64} sc1")
    a("s_mov_b64 exec, -1")
    S_FA1, S_FA2, S_FCS = 60, 61, 62
    def f_flags(t_):
        t_("s_lshr_b32 s56, s2, 4")
        t_("s_lshl_b32 s56, s56, 7")
        t_("s_and_b32 s57, s2, 15")
        t_("s_lshl_b32 s57, s57, 2")
        t_("s_add_u32 s56, s56, s57")
        t_(f"s_add_u32 s{S_FA1}, s56, {WS_FLAG + FL_AS*128}")
        t_("s_and_b32 s56, s2, 7")
        t_("s_lshl_b32 s56, s56, 7")
        t_("s_lshr_b32 s57, s2, 3")
        t_("s_lshl_b32 s57, s57, 2")
        t_("s_add_u32 s56, s56, s57")
        t_(f"s_add_u32 s{S_FA2}, s56, {WS_FLAG + FL_AK*128}")
        t_(f"s_lshl_b32 s56, s{S_SL}, 7")
        t_(f"s_lshl_b32 s57, s{S_RB}, 2")
        t_("s_add_u32 s56, s56, s57")
        t_(f"s_add_u32 s{S_FCS}, s56, {WS_FLAG + FL_CS*128}")
    dma(3, cap(a, f_flags))
    a("s_waitcnt vmcnt(10)")
    a("s_barrier")
    VPA, VPT = 100, 101
    def f_poll(t_):
        t_("s_lshr_b32 s58, s2, 5")
        t_("s_lshl_b32 s58, s58, 7")
        t_(f"s_add_u32 s58, s58, {WS_FLAG + FL_AK*128}")
        t_("v_and_b32 v6, 31, v2")
        t_(f"v_lshl_add_u32 v{VPA}, v6, 2, s58")
        t_(f"s_lshl_b32 s56, s{S_RB}, 7")
        t_(f"s_add_u32 s56, s56, {WS_FLAG + FL_AS*128}")
        t_(f"s_lshl_b32 s57, s{S_SL}, 7")
        t_(f"s_add_u32 s57, s57, {WS_FLAG + FL_CS*128}")
        t_("v_mov_b32 v6, s56")
        t_("v_mov_b32 v7, s57")
        t_("v_cmp_le_u32 vcc, 16, v2")
        t_.nop(2)
        t_("v_cndmask_b32 v6, v6, v7, vcc")
        t_("v_lshl_add_u32 v6, v3, 2, v6")
        t_("v_cmp_gt_u32 vcc, 32, v2")
        t_.nop(2)
        t_(f"v_cndmask_b32 v{VPA}, v{VPA}, v6, vcc")
    a(f"v_mov_b32 v8, {L_NON}")
    a("ds_read_b32 v9, v8")
    a("s_waitcnt lgkmcnt(0)")
    a(f"v_readfirstlane_b32 s{S_NONCE}, v9")
    lab = a.newlabel("Lyn")
    a(f"s_cmp_lg_u32 s{S_NONCE}, 0")
    a(f"s_cbranch_scc1 {lab}")
    get_nonce(a, 10)
    a(f"v_mov_b32 v9, s{S_NONCE}")
    a("ds_write_b32 v8, v9")
    a("s_waitcnt lgkmcnt(0)")
    a.label(lab)
    lab = a.newlabel("Lyp")
    a(f"s_cmp_lg_u32 s{S_Y}, 0")
    a(f"s_cbranch_scc1 {lab}")
    publish(a, 8, [S_FA1, S_FA2, S_FCS])
    a.label(lab)
    dma(4, cap(a, f_poll))
    a("s_waitcnt vmcnt(10)")
    a("s_barrier")
    VWD = [102, 103]; VWDY = 107
    def f_wd(t_):
        t_("v_lshrrev_b32 v5, 3, v2")
        t_("v_and_b32 v7, 7, v2")
        t_("v_and_b32 v6, 2, v5")
        t_("v_xor_b32 v6, v6, v7")
        t_("v_xor_b32 v8, 4, v6")
        t_("v_lshlrev_b32 v6, 4, v6")
        t_("v_lshlrev_b32 v8, 4, v8")
        t_(f"v_lshl_add_u32 v{VWD[0]}, v5, 10, v6")
        t_(f"v_lshl_add_u32 v{VWD[1]}, v5, 10, v8")
        t_(f"s_lshl_b32 s56, s{S_CB}, 7")
        t_(f"v_add_u32 v{VWD[0]}, s56, v{VWD[0]}")
        t_(f"v_add_u32 v{VWD[1]}, s56, v{VWD[1]}")
        t_(f"s_and_b32 s56, s{S_Y}, 1")
        t_(f"v_cmp_eq_u32 vcc, s56, 1") if False else None
        t_(f"s_cmp_eq_u32 s56, 1")
        t_(f"s_cselect_b64 vcc, -1, 0")
        t_(f"v_cndmask_b32 v{VWDY}, v{VWD[0]}, v{VWD[1]}, vcc")
        t_("v_subrev_u32 v9, 256, v0")
        t_("v_lshrrev_b32 v6, 7, v9")
        t_("v_and_b32 v7, 127, v9")
        t_("s_lshl_b32 s56, s2, 13")
        t_("v_lshlrev_b32 v6, 12, v6")
        t_("v_lshl_add_u32 v6, v7, 4, v6")
        t_(f"v_add_u32 v{VCO}, s56, v6")
        t_(f"v_subrev_u32 v{VCO+1}, 4, v{VCO}")
    VCH, VCXA, VCXS, VCHP = 108, 116, 124, 132
    VCO = 134
    dma(5, cap(a, f_wd))
    a("s_waitcnt vmcnt(10)")
    a("s_barrier")
    dma(6)
    a("s_waitcnt vmcnt(10)")
    a("s_barrier")
    a(f"buffer_load_dword v{VPT}, v{VPA}, s[{R_WS}:{R_WS+3}], 0 offen sc1")
    dma(7)
    a("s_waitcnt vmcnt(10)")
    lab = a.newlabel("Lyq")
    a(f"v_cmp_ne_u32 vcc, s{S_NONCE}, v{VPT}")
    a(f"s_cbranch_vccz {lab}")
    poll(a, VPA, VPT)
    a.label(lab)
    a("s_barrier")
    def wd_pref(rs):
        for r in rs:
            ks = r if r < NRES else 22 + (r - NRES)
            a(f"s_lshl_b32 s56, s{S_Y}, 13")
            a(f"s_add_u32 s56, s56, {ks*32768}")
            a(f"s_lshl_b32 s57, s{S_Y}, 10")
            a(f"s_add_u32 m0, s57, {r*4096}")
            a.nop(1)
            a(f"buffer_load_dwordx4 v{VWDY}, s[{R_WD}:{R_WD+3}], s56 offen lds")
    a("v_lshlrev_b32 v8, 4, v2")
    a(f"s_mul_i32 s56, s{S_SL}, {16*768}")
    a(f"s_mul_i32 s57, s{S_Y}, 3072")
    a("s_add_u32 s56, s56, s57")
    a(f"s_add_u32 s56, s56, {WS_CSP}")
    for i in range(3):
        a(f"s_add_u32 m0, s57, {L_CONV + i*1024}")
        a(f"s_add_u32 s58, s56, {i*1024}")
        a(f"buffer_load_dwordx4 v8, s[{R_WS}:{R_WS+3}], s58 offen sc1 lds")
    a(f"s_lshl_b32 s56, s{S_RB}, 10")
    a(f"s_add_u32 s56, s56, {WS_STATS}")
    lab = a.newlabel("Lys")
    a(f"s_cmp_lg_u32 s{S_Y}, 3")
    a(f"s_cbranch_scc1 {lab}")
    a(f"s_mov_b32 m0, {L_ST}")
    a.nop(1)
    a(f"buffer_load_dwordx4 v8, s[{R_WS}:{R_WS+3}], s56 offen sc1 lds")
    a.label(lab)
    a("s_waitcnt vmcnt(0)")
    a("s_barrier")
    stamp(a)
    a(f"s_mov_b32 s56, {WS_KVT}")
    for e in range(2):
        a(f"buffer_load_dwordx4 {vr(VCH+4*e,4)}, v{VCO}, s[{R_H}:{R_H+3}], 0 offen offset:{e*2048}")
        a(f"buffer_load_dword v{VCHP+e}, v{VCO+1}, s[{R_H}:{R_H+3}], 0 offen offset:{e*2048}")
        a(f"buffer_load_dwordx4 {vr(VCXA+4*e,4)}, v{VCO}, s[{R_WS}:{R_WS+3}], s56 offen offset:{e*2048} sc1")
        a(f"buffer_load_dwordx4 {vr(VCXS+4*e,4)}, v{VCO+1}, s[{R_WS}:{R_WS+3}], s56 offen offset:{e*2048} sc1")
    lab = a.newlabel("Lyc")
    a(f"s_cmp_ge_u32 s{S_Y}, 3")
    a(f"s_cbranch_scc1 {lab}")
    a("v_lshlrev_b32 v8, 2, v9")
    a(f"v_add_u32 v10, {L_CONV}, v8")
    for r in range(16):
        a(f"ds_read_b32 v{12+r}, v10 offset:{r*768}")
    a("s_waitcnt lgkmcnt(0)")
    for r in range(1, 16):
        a(f"v_add_f32 v12, v12, v{12+r}")
    a(f"v_add_u32 v8, {L_CS}, v8")
    a("ds_write_b32 v8, v12")
    a.label(lab)
    a("s_waitcnt lgkmcnt(0)")
    a("s_barrier")
    stamp(a)
    wd_pref(range(0, 10))
    a("s_waitcnt vmcnt(10)")
    a("v_lshrrev_b32 v6, 7, v9")
    a("v_and_b32 v7, 127, v9")
    a(f"v_mul_u32_u24 v8, {C_CH}, v6")
    a(f"v_add_u32 v10, {L_CONV}, v8")
    a("v_lshl_add_u32 v8, v7, 4, v10")
    for i in range(4): a(f"v_mov_b32 v{12+i}, 0")
    a("v_cmp_eq_u32 vcc, 0, v7")
    a.nop(2)
    a(f"v_cndmask_b32 v{VCHP}, v{VCHP}, v12, vcc")
    for e in range(2):
        h = VCH + 4*e
        a(f"ds_write_b128 v8, {vr(h,4)} offset:{C_HO + 64 + e*2048}")
        a(f"v_alignbit_b32 v16, v{h}, v{VCHP+e}, 16")
        a(f"v_alignbit_b32 v17, v{h+1}, v{h}, 16")
        a(f"v_alignbit_b32 v18, v{h+2}, v{h+1}, 16")
        a(f"v_alignbit_b32 v19, v{h+3}, v{h+2}, 16")
        a(f"ds_write_b128 v8, v[16:19] offset:{C_HEV + 64 + e*2048}")
        a(f"ds_write_b128 v8, {vr(VCXA+4*e,4)} offset:{C_XO + e*2048}")
        a(f"ds_write_b128 v8, {vr(VCXS+4*e,4)} offset:{C_XE + e*2048}")
        a.nop(1)
    a("v_cmp_gt_u32 vcc, 4, v7")
    a("s_and_saveexec_b64 s[42:43], vcc")
    a(f"ds_write_b128 v8, v[12:15] offset:{C_HEV}")
    a(f"ds_write_b128 v8, v[12:15] offset:{C_HO}")
    a("s_mov_b64 exec, s[42:43]")
    a("v_cmp_gt_u32 vcc, 32, v7")
    a("s_and_saveexec_b64 s[42:43], vcc")
    a(f"ds_write_b128 v8, v[12:15] offset:{C_XO + 4096}")
    a("s_mov_b64 exec, s[42:43]")
    a("v_cmp_gt_u32 vcc, 32, v7")
    a("v_cmp_lt_u32 s[56:57], 0, v7")
    a("s_and_b64 vcc, vcc, s[56:57]")
    a("s_and_saveexec_b64 s[42:43], vcc")
    a(f"ds_write_b128 v8, v[12:15] offset:{C_XE + 4096}")
    a("s_mov_b64 exec, s[42:43]")
    a("v_cmp_eq_u32 vcc, 127, v7")
    a("s_and_saveexec_b64 s[42:43], vcc")
    a(f"v_mov_b32 v12, v{VCXA+7}")
    a(f"ds_write_b128 v10, v[12:15] offset:{C_XE + 4096}")
    a("s_mov_b64 exec, s[42:43]")
    wd_pref(range(10, 30))
    a("s_waitcnt vmcnt(0) lgkmcnt(0)")
    a("s_barrier")
    S_CH, S_HALF, S_CB0 = 44, 45, 46
    a(f"s_lshr_b32 s{S_CH}, s{S_Y}, 1")
    a(f"s_and_b32 s{S_HALF}, s{S_Y}, 1")
    a(f"s_mul_i32 s{S_CB0}, s{S_CH}, {C_CH}")
    a(f"s_add_u32 s{S_CB0}, s{S_CB0}, {L_CONV}")
    a(f"s_lshl_b32 s56, s{S_Y}, 2")
    a(f"s_add_u32 s56, s56, {L_CF}")
    a("v_mov_b32 v11, s56")
    a("s_xor_b32 s56, s56, 4")
    a("v_mov_b32 v12, s56")
    a("v_lshrrev_b32 v45, 1, v3")
    a("v_lshlrev_b32 v46, 3, v45")
    a("v_lshl_add_u32 v46, v4, 4, v46")
    a("v_and_b32 v47, 1, v3")
    a(f"v_mul_u32_u24 v48, {C_HO - C_HEV}, v47")
    a("v_add_u32 v46, v46, v48")
    a(f"s_lshl_b32 s56, s{S_HALF}, 8")
    a(f"s_add_u32 s56, s56, s{S_CB0}")
    a(f"s_add_u32 s57, s56, {C_HEV + 8}")
    a("v_add_u32 v46, s57, v46")
    a("v_lshlrev_b32 v49, 4, v4")
    a("v_lshlrev_b32 v50, 6, v45")
    a("v_sub_u32 v49, v49, v50")
    a(f"v_mul_u32_u24 v48, {(C_XE + 456) - (C_XO + 448)}, v47")
    a("v_sub_u32 v49, v49, v48")
    a(f"s_add_u32 s57, s56, {C_XE + 456}")
    a("v_add_u32 v49, s57, v49")
    stamp(a)
    VA, VB = 46, 49
    CACC = 52
    CFS = [108, 172]
    def fa(s, i): return CFS[s] + 4*i
    def fb(s, i): return CFS[s] + 32 + 4*i
    def creads(c, s):
        r = []
        for m in range(8):
            for hf in range(2):
                r.append(f"ds_read_b64 {vr(fa(s,m)+2*hf,2)}, v{VA} offset:{m*512 + c*64 + hf*8}")
            for hf in range(2):
                r.append(f"ds_read_b64 {vr(fb(s,m)+2*hf,2)}, v{VB} offset:{(7-m)*512 + c*64 + hf*8}")
        return r
    pairs = []
    for m in range(8):
        ps = [(x, m) for x in range(m)] + [(m, x) for x in range(m)] + [(m, m)]
        pairs += [p for p in ps if p[0] + p[1] <= 7]
    touched = set()
    for x in creads(0, 0): a(x)
    for c in range(4):
        s = c & 1
        nxt = creads(c + 1, s ^ 1) if c < 3 else []
        a("s_waitcnt lgkmcnt(0)")
        m = []
        for (a1, u) in pairs:
            Tt = a1 + u
            cc = vr(CACC + 4*Tt, 4) if Tt in touched else "0"
            touched.add(Tt)
            m.append(f"v_mfma_f32_16x16x32_bf16 {vr(CACC+4*Tt,4)}, {vr(fa(s,a1),4)}, {vr(fb(s,u),4)}, {cc}")
        f = [[] for _ in m]
        for k, x in enumerate(nxt):
            f[(k * 28) // 32].append(x)
        interleave(a, m, f)
    stamp(a)
    a.nop(4)
    a("v_lshlrev_b32 v5, 4, v2")
    a("v_mov_b32 v13, 2")
    a("ds_write_b32 v11, v13")
    a(f"s_lshl_b32 s56, s{S_HALF}, 12")
    a(f"s_add_u32 s56, s56, s{S_CB0}")
    a("v_add_u32 v6, s56, v5")
    a(f"s_xor_b32 s57, s{S_HALF}, 1")
    a("s_lshl_b32 s57, s57, 12")
    a(f"s_add_u32 s57, s57, s{S_CB0}")
    a("v_add_u32 v7, s57, v5")
    a("v_lshlrev_b32 v8, 4, v4")
    a("v_lshl_add_u32 v8, v47, 2, v8")
    a("v_lshl_add_u32 v8, v45, 6, v8")
    a(f"s_lshl_b32 s56, s{S_HALF}, 11")
    a(f"s_sub_u32 s56, s{S_CB0}, s56")
    a(f"s_add_u32 s56, s56, {C_XO + 2042*2 - 3*512}")
    a("v_sub_u32 v9, s56, v8")
    K = 32
    for t in range(4):
        a(f"ds_read_b32 v{K+2*t}, v9 offset:{(3-t)*512}")
        a(f"ds_read_b32 v{K+2*t+1}, v9 offset:{(3-t)*512+8}")
    lds_flag_wait(a, 12, 14, 2)
    lk0 = a.newlabel("Lr"); lk1 = a.newlabel("Lr")
    a(f"s_cmp_eq_u32 s{S_HALF}, 0")
    a(f"s_cbranch_scc0 {lk0}")
    for t in range(4):
        a(f"ds_write_b128 v6, {vr(CACC+16+4*t,4)} offset:{t*1024}")
    a(f"s_branch {lk1}")
    a.label(lk0)
    for t in range(4):
        a(f"ds_write_b128 v6, {vr(CACC+4*t,4)} offset:{t*1024}")
    a.nop(2)
    for i in range(16):
        a(f"v_mov_b32 v{CACC+i}, v{CACC+16+i}")
    a.label(lk1)
    a("s_waitcnt lgkmcnt(0)")
    a("v_mov_b32 v13, 3")
    a("ds_write_b32 v11, v13")
    a(f"s_lshl_b32 s57, s{S_DD}, 16")
    a(f"s_and_b32 s58, s{S_DD}, 0xffff0000")
    a(f"s_cmp_eq_u32 s{S_CH}, 0")
    a("s_cselect_b32 s55, s57, s58")
    a(f"s_lshl_b32 s54, s{S_HALF}, 11")
    a(f"s_add_u32 s54, s54, s{S_CB0}")
    a(f"s_add_u32 s54, s54, {C_XE}")
    a("v_add_u32 v10, s54, v8")
    for t in range(4):
        k4, k0 = K + 2*t, K + 2*t + 1
        a(f"v_and_b32 v{16+4*t}, 0xffff0000, v{k0}")
        a(f"v_lshlrev_b32 v{17+4*t}, 16, v{k0}")
        a(f"v_and_b32 v{18+4*t}, 0xffff0000, v{k4}")
        a(f"v_lshlrev_b32 v{19+4*t}, 16, v{k4}")
    for i in range(16):
        a(f"v_mul_f32 v{16+i}, s55, v{16+i}")
    lds_flag_wait(a, 12, 14, 3)
    R = 84
    for t in range(4):
        a(f"ds_read_b128 {vr(R+4*t,4)}, v7 offset:{t*1024}")
    a("s_waitcnt lgkmcnt(0)")
    for i in range(16):
        a(f"v_add_f32 v{CACC+i}, v{CACC+i}, v{R+i}")
    for t in range(4):
        y = CACC + 4*t
        a(f"v_cvt_pk_bf16_f32 v{R+2*t}, v{y}, v{y+1}")
        a(f"v_cvt_pk_bf16_f32 v{R+2*t+1}, v{y+2}, v{y+3}")
    for t in range(4):
        y = CACC + 4*t
        a(f"v_lshlrev_b32 v{y}, 16, v{R+2*t}")
        a(f"v_and_b32 v{y+1}, 0xffff0000, v{R+2*t}")
        a(f"v_lshlrev_b32 v{y+2}, 16, v{R+2*t+1}")
        a(f"v_and_b32 v{y+3}, 0xffff0000, v{R+2*t+1}")
    for i in range(16):
        a(f"v_add_f32 v{CACC+i}, v{CACC+i}, v{16+i}")
    for t in range(4):
        y = CACC + 4*t
        a(f"v_cvt_pk_bf16_f32 v{R+2*t}, v{y}, v{y+1}")
        a(f"v_cvt_pk_bf16_f32 v{R+2*t+1}, v{y+2}, v{y+3}")
    for t in range(4):
        a(f"ds_write_b32 v10, v{R+2*t} offset:{t*512}")
        a(f"ds_write_b32 v10, v{R+2*t+1} offset:{t*512+8}")
    a("v_add_u32 v11, s54, v5")
    a("s_lshl_b32 s56, s2, 1")
    a(f"s_add_u32 s56, s56, s{S_CH}")
    a("s_lshl_b32 s56, s56, 12")
    a(f"s_lshl_b32 s57, s{S_HALF}, 11")
    a("s_add_u32 s56, s56, s57")
    a(f"s_add_u32 s56, s56, {WS_YT}")
    a("v_add_u32 v12, s56, v5")
    a("s_waitcnt lgkmcnt(0)")
    a("ds_read_b128 v[24:27], v11")
    a("ds_read_b128 v[28:31], v11 offset:1024")
    a("s_waitcnt lgkmcnt(1)")
    a(f"buffer_store_dwordx4 v[24:27], v12, s[{R_WS}:{R_WS+3}], 0 offen sc1")
    a("s_waitcnt lgkmcnt(0)")
    a(f"buffer_store_dwordx4 v[28:31], v12, s[{R_WS}:{R_WS+3}], 0 offen offset:1024 sc1")
    stamp(a)
    a(f"s_lshr_b32 s47, s{S_Y}, 1")
    a(f"s_and_b32 s48, s{S_Y}, 1")
    a("s_mul_i32 s50, s47, 22")
    a("s_add_u32 s50, s50, s48")
    a("s_lshl_b32 s51, s47, 13")
    a("s_lshl_b32 s52, s48, 12")
    a("s_add_u32 s51, s51, s52")
    a(f"s_add_u32 s51, s51, {F2_HB}")
    a(f"s_mul_i32 s53, s{S_RB2}, 43")
    a("s_add_u32 s53, s53, s50")
    a("s_lshl_b32 s53, s53, 12")
    a(f"s_add_u32 s53, s53, {WS_HF}")
    a("v_lshlrev_b32 v17, 4, v2")
    final_loads(a)
    a("s_barrier")
    def dma2(I):
        slot = I % F2_NSLOT
        for st in range(4):
            a(f"s_add_u32 m0, s51, {slot*F2_SLOT + st*1024}")
            a(f"s_add_u32 s56, s53, {I*8192 + st*1024}")
            a(f"buffer_load_dwordx4 v17, s[{R_WS}:{R_WS+3}], s56 offen lds")
    dma2(4); dma2(5)
    a("s_lshr_b32 s56, s2, 5")
    a("s_lshl_b32 s56, s56, 9")
    a("s_and_b32 s57, s2, 31")
    a("s_lshl_b32 s57, s57, 4")
    a("s_add_u32 s56, s56, s57")
    a(f"s_lshl_b32 s57, s{S_Y}, 2")
    a("s_add_u32 s56, s56, s57")
    a(f"s_add_u32 s55, s56, {WS_FLAG + FL_C2*128}")
    for I in range(1, 8):
        last = min(max(5, I + 4), 10)
        if I == 7:
            a("s_waitcnt vmcnt(0)")
        elif 4 <= I + 1:
            a(f"s_waitcnt vmcnt({4*(last - (I + 1))})")
        a("s_barrier")
        if I == 3:
            publish(a, 8, [55])
        if 6 <= I + 5 <= 10: dma2(I + 5)
    a(f"s_lshl_b32 s56, s{S_CB}, 9")
    a(f"s_add_u32 s56, s56, {WS_FLAG + FL_C2*128}")
    a("v_lshl_add_u32 v6, v2, 3, s56")
    lab = a.newlabel("Lpc"); out = a.newlabel("Lpc")
    a("s_mov_b32 s40, 0")
    a.label(lab)
    a(f"buffer_load_dwordx2 v[8:9], v6, s[{R_WS}:{R_WS+3}], 0 offen sc1")
    a("s_add_u32 s40, s40, 1")
    a("s_waitcnt vmcnt(0)")
    a(f"v_cmp_ne_u32 vcc, s{S_NONCE}, v8")
    a(f"v_cmp_ne_u32 s[56:57], s{S_NONCE}, v9")
    a("s_or_b64 vcc, vcc, s[56:57]")
    a(f"s_cmp_ge_u32 s40, {POLL_MAX}")
    a(f"s_cbranch_scc1 {out}")
    a(f"s_cbranch_vccnz {lab}")
    a.label(out)
    a("v_lshrrev_b32 v5, 3, v2")
    a("v_and_b32 v7, 7, v2")
    for e in range(2):
        a("v_and_b32 v6, 2, v5")
        if e: a("v_or_b32 v6, 4, v6")
        a("v_xor_b32 v6, v6, v7")
        a("v_lshlrev_b32 v6, 4, v6")
        a("v_lshl_add_u32 v6, v5, 12, v6")
        a(f"s_lshl_b32 s56, s{S_CB}, 18")
        a(f"s_lshl_b32 s57, s{S_Y}, 16")
        a("s_add_u32 s56, s56, s57")
        a(f"s_lshl_b32 s57, s{S_RB2}, 7")
        a("s_add_u32 s56, s56, s57")
        a(f"s_add_u32 s56, s56, {WS_YT + e*32768}")
        a(f"s_lshl_b32 s57, s{S_Y}, 11")
        a(f"s_add_u32 m0, s57, {F2_YT + e*1024}")
        a.nop(1)
        a(f"buffer_load_dwordx4 v6, s[{R_WS}:{R_WS+3}], s56 offen sc1 lds")
    a("s_barrier")

def final(a):
    a.label("Lfinal")
    a("s_waitcnt lgkmcnt(0) vmcnt(0)")
    a("s_barrier")
    a(f"s_and_b32 s56, s{S_W}, 3")
    a(f"s_lshr_b32 s59, s{S_W}, 2")
    a(f"s_mul_i32 s57, s56, {16*F2_PP}")
    a("s_lshl_b32 s58, s59, 7")
    a("s_add_u32 s57, s57, s58")
    a(f"v_mul_u32_u24 v6, {F2_PP}, v3")
    a("v_lshl_add_u32 v6, v4, 5, v6")
    a("v_add_u32 v6, s57, v6")
    a("ds_read_b128 v[40:43], v6")
    a("ds_read_b128 v[44:47], v6 offset:16")
    a(f"ds_read_b128 v[48:51], v6 offset:{64*F2_PP}")
    a(f"ds_read_b128 v[52:55], v6 offset:{64*F2_PP+16}")
    a("v_lshrrev_b32 v7, 2, v2")
    a("v_and_b32 v7, 3, v7")
    a("v_and_b32 v16, 2, v7")
    a("v_and_b32 v17, 1, v4")
    a("v_lshl_or_b32 v16, v17, 2, v16")
    a("v_and_b32 v17, 3, v2")
    a("v_lshrrev_b32 v18, 1, v17")
    a("s_lshl_b32 s57, s56, 1")
    a("v_add_u32 v18, s57, v18")
    a("v_xor_b32 v18, v18, v16")
    a("v_lshlrev_b32 v18, 4, v18")
    a("v_and_b32 v17, 1, v17")
    a("v_lshl_add_u32 v18, v17, 3, v18")
    a("v_lshl_add_u32 v7, v4, 3, v7")
    a("v_lshl_add_u32 v18, v7, 7, v18")
    a("s_lshl_b32 s57, s59, 12")
    a(f"s_add_u32 s57, s57, {F2_YT}")
    a("v_add_u32 v18, s57, v18")
    a("ds_read_b64_tr_b16 v[56:57], v18")
    a("ds_read_b64_tr_b16 v[58:59], v18 offset:512")
    a(f"s_load_dwordx2 s[40:41], s[0:1], {KA_OUT}")
    a("s_mov_b32 s56, 0xbfb8aa3b")
    a("s_waitcnt lgkmcnt(0)")
    ptr_srd(a, R_OUT, 40, S*D*2)
    for j in range(8): a(f"v_add_f32 v{40+j}, v{40+j}, v{48+j}")
    for j in range(8): a(f"v_mul_f32 v{48+j}, s56, v{40+j}")
    for j in range(8): a(f"v_exp_f32 v{48+j}, v{48+j}")
    for m in range(4):
        a(f"v_lshlrev_b32 v{60+2*m}, 16, v{VFQ+m}")
        a(f"v_and_b32 v{61+2*m}, 0xffff0000, v{VFQ+m}")
        a(f"v_lshlrev_b32 v{68+2*m}, 16, v{56+m}")
        a(f"v_and_b32 v{69+2*m}, 0xffff0000, v{56+m}")
    for j in range(8): a(f"v_add_f32 v{48+j}, 1.0, v{48+j}")
    for j in range(8): a(f"v_rcp_f32 v{48+j}, v{48+j}")
    for j in range(8): a(f"v_sub_f32 v{76+j}, v{60+j}, v{VFS}")
    for j in range(8): a(f"v_mul_f32 v{76+j}, v{76+j}, v{VFS+1}")
    for j in range(8): a(f"v_mul_f32 v{40+j}, v{40+j}, v{48+j}")
    for j in range(8): a(f"v_mul_f32 v{76+j}, v{76+j}, v{68+j}")
    for j in range(8): a(f"v_fmac_f32 v{60+j}, v{76+j}, v{40+j}")
    for m in range(4):
        a(f"v_cvt_pk_bf16_f32 v{8+m}, v{60+2*m}, v{61+2*m}")
    a(f"buffer_store_dwordx4 v[8:11], v{VFO}, s[{R_OUT}:{R_OUT+3}], 0 offen")
    asmlib.Stamps.n = 15
    stamp(a)
    if asmlib.PROF:
        a("s_waitcnt lgkmcnt(0)")
        a("s_lshl_b32 s60, s2, 3")
        a(f"s_add_u32 s60, s60, s{S_W}")
        a("s_lshl_b32 s60, s60, 7")
        a(f"s_add_u32 s60, s60, {WS_PROF}")
        a("v_mov_b32 v20, s60")
        for i in range(16):
            a(f"v_mov_b32 v21, s{STAMP_BASE+2*i}")
            a(f"buffer_store_dword v21, v20, s[{R_WS}:{R_WS+3}], 0 offen offset:{4*i}")
            a.nop(2)
    a.label("Ldone")
    a("s_endpgm")

def gen():
    a = A()
    stamp_reset()
    prologue(a)
    path_X(a)
    path_Y(a)
    final(a)
    return a

def build(prof=False):
    asmlib.PROF = prof
    a = gen()
    hdr = open("recurrent_scan__ssm_conv_h3__glu_gated_geglu__prompt.s.ref").read().split("; Override")[0]
    s = hdr + f"; @launch grid=(256,1,1) block=(512,1,1) lds={LDS_TOTAL}\n"
    s += '.amdgcn_target "amdgcn-amd-amdhsa--gfx950"\n.text\n'
    s += kernel_header(NAME) + a.text()
    s += '.section .rodata,"a"\n.p2align 6\n' + kernel_desc(NAME, 256, 100)
    return s

if __name__ == "__main__":
    prof = len(sys.argv) > 2 and sys.argv[2] == "prof"
    open(sys.argv[1], "w").write(build(prof))
```

```python
import sys, struct
import asmlib
from asmlib import *

NAME = "recurrent_scan__ssm_conv_h3__glu_gated_geglu__prompt_kernel"
S, D, F = 2048, 512, 1376
KA_Q, KA_K, KA_V, KA_SK, KA_H, KA_DD, KA_BX, KA_WG, KA_WU, KA_WD, KA_OUT, KA_DBG, KA_WS = [8*i for i in range(13)]

WS_KVT   = 0x000000
WS_STATS = 0x200000
WS_CSP   = 0x210000
WS_FLAG  = 0x300000
FL_AS, FL_AK, FL_CS, FL_C, FL_H = 0, 16, 24, 40, 48
WS_HF    = 0x400000
WS_YT    = 0xA00000
WS_SIZE  = 0x10000000

def f2u(x): return struct.unpack("<I", struct.pack("<f", x))[0]

S_W = 3
R_Q, R_WS, R_W, R_K, R_V, R_SK, R_DBG = 4, 8, 12, 16, 20, 24, 28
R_H, R_WD, R_OUT = R_K, R_V, R_SK
S_RB, S_SL, S_NONCE, S_RB2, S_CB, S_JJ = 32, 33, 36, 37, 38, 39
S_A, S_B = 34, 35
S_DD = 63

F1_WSLOT = 24576
F1_QBASE = 73728
F1_QSLOT = 16384
L_CS = 122880
L_ST = L_CS + 768
L_NON = L_ST + 1024
L_CF = L_NON + 16
L_CONV = L_CF + 48
C_HEV, C_HO, C_XO, C_XE = 0, 4224, 8448, 13056
C_CH = 17664
LDS_TOTAL = 163840
assert L_CONV + 2*C_CH <= LDS_TOTAL
L_RED = 0
F2_SLOT = 16384
F2_NSLOT = 6
F2_LW = 0
F2_HB = 14*4096
F2_YT = F2_HB + 6*16384
F2_P = 0
F2_PP = 272
NRES = 15

POLL_MAX = 20000

def wave_sum16(a, v):
    a(f"v_add_f32_dpp v{v}, v{v}, v{v} quad_perm:[1,0,3,2] row_mask:0xf bank_mask:0xf")
    a.nop(2)
    a(f"v_add_f32_dpp v{v}, v{v}, v{v} quad_perm:[2,3,0,1] row_mask:0xf bank_mask:0xf")
    a.nop(2)
    a(f"v_add_f32_dpp v{v}, v{v}, v{v} row_half_mirror row_mask:0xf bank_mask:0xf")
    a.nop(2)
    a(f"v_add_f32_dpp v{v}, v{v}, v{v} row_mirror row_mask:0xf bank_mask:0xf")

def wave_sum64(a, v, s0):
    a.nop(2)
    wave_sum16(a, v)
    a.nop(1)
    for i in range(4):
        a(f"v_readlane_b32 s{s0+i}, v{v}, {16*i}")
    a.nop(2)
    a(f"v_mov_b32 v{v}, s{s0}")
    for i in range(1, 4):
        a(f"v_add_f32 v{v}, s{s0+i}, v{v}")

def ptr_srd(a, dst, lo, nbytes):
    srd(a, dst, lo, lo + 1, nbytes)

def get_nonce(a, vt):
    lab = a.newlabel("Lnon"); out = a.newlabel("Lnon")
    a(f"s_cmp_lg_u32 s{S_NONCE}, 0")
    a(f"s_cbranch_scc1 {out}")
    a("s_mov_b32 s40, 0")
    a(f"v_mov_b32 v{vt}, 0")
    a.label(lab)
    a(f"buffer_load_dword v{vt+1}, v{vt}, s[{R_DBG}:{R_DBG+3}], 0 offen sc1")
    a("s_add_u32 s40, s40, 1")
    a("s_waitcnt vmcnt(0)")
    a(f"v_readfirstlane_b32 s{S_NONCE}, v{vt+1}")
    a(f"s_cmp_ge_u32 s40, {POLL_MAX}")
    a(f"s_cbranch_scc1 {out}")
    a(f"s_cmp_eq_u32 s{S_NONCE}, 0")
    a(f"s_cbranch_scc1 {lab}")
    a.label(out)

def publish(a, vt, addr_sgprs):
    a(f"v_mov_b32 v{vt+1}, s{S_NONCE}")
    a("s_mov_b64 exec, 1")
    for s in addr_sgprs:
        a(f"v_mov_b32 v{vt}, s{s}")
        a(f"buffer_store_dword v{vt+1}, v{vt}, s[{R_WS}:{R_WS+3}], 0 offen sc1")
        a.nop(1)
    a("s_mov_b64 exec, -1")

def poll(a, vaddr, vt, first_issued=False):
    lab = a.newlabel("Lpoll"); out = a.newlabel("Lpoll"); chk = a.newlabel("Lpoll")
    a("s_mov_b32 s40, 0")
    if first_issued:
        a(f"s_branch {chk}")
    a.label(lab)
    a(f"buffer_load_dword v{vt}, v{vaddr}, s[{R_WS}:{R_WS+3}], 0 offen sc1")
    a.label(chk)
    a("s_add_u32 s40, s40, 1")
    a("s_waitcnt vmcnt(0)")
    a(f"v_cmp_ne_u32 vcc, s{S_NONCE}, v{vt}")
    a(f"s_cmp_ge_u32 s40, {POLL_MAX}")
    a(f"s_cbranch_scc1 {out}")
    a(f"s_cbranch_vccnz {lab}")
    a.label(out)

def interleave(a, m, fills):
    for i, x in enumerate(m):
        a(x)
        for y in fills[i]: a(y)

def spread(n_m, items, start=0, per=1):
    f = [[] for _ in range(n_m)]
    i = start
    for k, x in enumerate(items):
        slot = min(start + k // per, n_m - 1)
        f[slot].append(x)
    return f

VFQ, VFS, VFO = 236, 240, 242
FL_C2 = 112

def prologue(a):
    a("s_cmp_ge_u32 s2, 256")
    a("s_cbranch_scc1 Ldone")
    stamp(a)
    a("s_load_dwordx4 s[40:43], s[0:1], 0")
    a("s_load_dwordx4 s[44:47], s[0:1], 16")
    a(f"s_load_dwordx4 s[48:51], s[0:1], {KA_WG}")
    a(f"s_load_dwordx4 s[52:55], s[0:1], {KA_DBG}")
    a("v_lshrrev_b32 v1, 6, v0")
    a("v_and_b32 v2, 63, v0")
    a(f"v_readfirstlane_b32 s{S_W}, v1")
    a("v_and_b32 v3, 15, v2")
    a("v_lshrrev_b32 v4, 4, v2")
    a("s_and_b32 s56, s2, 7")
    a("s_lshr_b32 s57, s2, 3")
    a("s_and_b32 s58, s56, 1")
    a("s_lshl_b32 s58, s58, 3")
    a("s_and_b32 s59, s57, 7")
    a(f"s_add_u32 s{S_RB}, s58, s59")
    a("s_lshr_b32 s58, s56, 1")
    a("s_lshl_b32 s58, s58, 2")
    a("s_lshr_b32 s59, s57, 3")
    a(f"s_add_u32 s{S_SL}, s58, s59")
    a("s_lshr_b32 s58, s56, 1")
    a("s_lshl_b32 s58, s58, 3")
    a("s_and_b32 s59, s57, 7")
    a(f"s_add_u32 s{S_RB2}, s58, s59")
    a("s_and_b32 s58, s56, 1")
    a("s_lshl_b32 s58, s58, 2")
    a("s_lshr_b32 s59, s57, 3")
    a(f"s_add_u32 s{S_CB}, s58, s59")
    a(f"s_mov_b32 s{S_NONCE}, 0")
    a("s_waitcnt lgkmcnt(0)")
    ptr_srd(a, R_Q, 40, S*D*2)
    ptr_srd(a, R_WS, 54, WS_SIZE)
    ptr_srd(a, R_DBG, 52, 256)
    lab = a.newlabel("Lpt")
    a(f"s_cmp_lg_u32 s{S_W}, 3")
    a(f"s_cbranch_scc1 {lab}")
    a("v_lshlrev_b32 v250, 21, v2")
    a("s_mov_b64 exec, 0x3f")
    a(f"buffer_load_dword v251, v250, s[{R_WS}:{R_WS+3}], 0 offen")
    a("s_mov_b64 exec, -1")
    a(f"s_load_dwordx2 s[56:57], s[0:1], {KA_WD}")
    a(f"s_load_dwordx2 s[58:59], s[0:1], {KA_H}")
    a("s_waitcnt lgkmcnt(0)")
    a("s_mov_b32 s60, s58")
    a("s_mov_b32 s61, s59")
    ptr_srd(a, 56+0, 56, 4096) if False else None
    a("s_and_b32 s57, s57, 0xffff")
    a("s_mov_b32 s58, 4096")
    a("s_mov_b32 s59, 0x00020000")
    a("v_mov_b32 v250, 0")
    a("s_mov_b64 exec, 1")
    a("buffer_load_dword v252, v250, s[56:59], 0 offen")
    a("s_mov_b32 s56, s60")
    a("s_and_b32 s57, s61, 0xffff")
    a("buffer_load_dword v253, v250, s[56:59], 0 offen")
    a("s_mov_b64 exec, -1")
    a.label(lab)
    a(f"s_cmp_ge_u32 s{S_W}, 4")
    a("s_cbranch_scc1 LY")

def final_loads(a):
    a(f"s_and_b32 s56, s{S_W}, 3")
    a(f"s_lshl_b32 s57, s{S_RB2}, 6")
    a("s_lshl_b32 s58, s56, 4")
    a("s_add_u32 s57, s57, s58")
    a("v_add_u32 v5, s57, v3")
    a(f"s_lshl_b32 s58, s{S_CB}, 7")
    a(f"s_lshr_b32 s59, s{S_W}, 2")
    a("s_lshl_b32 s59, s59, 6")
    a("s_add_u32 s58, s58, s59")
    a("v_lshlrev_b32 v6, 10, v5")
    a("v_lshl_add_u32 v6, v4, 4, v6")
    a(f"v_add_u32 v{VFO}, s58, v6")
    a(f"buffer_load_dwordx4 {vr(VFQ,4)}, v{VFO}, s[{R_Q}:{R_Q+3}], 0 offen")
    a("v_lshlrev_b32 v6, 3, v5")
    a(f"v_add_u32 v6, {WS_STATS}, v6")
    a(f"buffer_load_dwordx2 {vr(VFS,2)}, v6, s[{R_WS}:{R_WS+3}], 0 offen sc1")

def tr_lane128(a, vdst, vf, t0, t1):
    a(f"v_lshrrev_b32 v{t0}, 2, v2")
    a(f"v_and_b32 v{t0}, 3, v{t0}")
    a(f"v_lshl_add_u32 v{vdst}, v4, 3, v{t0}")
    a(f"v_lshlrev_b32 v{vdst}, 7, v{vdst}")
    a(f"v_and_b32 v{t1}, 3, v2")
    a(f"v_and_b32 v{vf}, 1, v{t1}")
    a(f"v_lshl_add_u32 v{vdst}, v{vf}, 3, v{vdst}")
    a(f"v_lshrrev_b32 v{t1}, 1, v{t1}")
    a(f"v_lshl_add_u32 v{vdst}, v{t1}, 4, v{vdst}")
    a(f"v_and_b32 v{t0}, 2, v{t0}")
    a(f"v_and_b32 v{t1}, 1, v4")
    a(f"v_lshl_or_b32 v{vf}, v{t1}, 2, v{t0}")

def tr_lane192(a, vdst, v2g, t0, t1):
    a(f"v_lshrrev_b32 v{t0}, 2, v2")
    a(f"v_and_b32 v{t0}, 3, v{t0}")
    a(f"v_lshl_add_u32 v{t0}, v4, 3, v{t0}")
    a(f"v_mul_u32_u24 v{vdst}, 192, v{t0}")
    a(f"v_and_b32 v{t0}, 3, v2")
    a(f"v_and_b32 v{t1}, 1, v{t0}")
    a(f"v_lshl_add_u32 v{vdst}, v{t1}, 3, v{vdst}")
    a(f"v_lshrrev_b32 v{t0}, 1, v{t0}")
    a(f"v_lshl_add_u32 v{vdst}, v{t0}, 4, v{vdst}")
    a(f"v_and_b32 v{v2g}, 1, v4")
    a(f"v_lshlrev_b32 v{v2g}, 1, v{v2g}")

R_WDX = R_K
NPF = 0
def l2_prefetch(a):
    a("s_and_b32 s56, s2, 7")
    a("s_lshr_b32 s57, s2, 3")
    a("s_and_b32 s58, s56, 1")
    a("s_lshl_b32 s58, s58, 20")
    a("s_lshl_b32 s59, s57, 15")
    a("s_add_u32 s58, s58, s59")
    a(f"s_lshl_b32 s59, s{S_W}, 13")
    a("s_add_u32 s58, s58, s59")
    a("v_lshl_add_u32 v100, v2, 7, s58")
    a(f"buffer_load_dword v244, v100, s[{R_Q}:{R_Q+3}], 0 offen")
    a("s_mov_b32 s59, 10923")
    a("v_mul_u32_u24 v101, s59, v2")
    a("v_lshrrev_b32 v101, 16, v101")
    a("v_mul_u32_u24 v102, 6, v101")
    a("v_sub_u32 v102, v2, v102")
    a("s_lshl_b32 s58, s57, 4")
    a(f"s_lshl_b32 s59, s{S_W}, 2")
    a("s_add_u32 s58, s58, s59")
    a("v_add_u32 v101, s58, v101")
    a("s_movk_i32 s59, 2752")
    a("v_mul_u32_u24 v101, s59, v101")
    a("v_lshl_add_u32 v101, v102, 7, v101")
    a("s_lshr_b32 s58, s56, 1")
    a("s_mul_i32 s58, s58, 768")
    a("v_add_u32 v101, s58, v101")
    a("v_cmp_gt_u32 vcc, 24, v2")
    a("v_mov_b32 v102, 0x7ff00000")
    a.nop(1)
    a("v_cndmask_b32 v101, v102, v101, vcc")
    ptr_srd(a, 56, 48, D*F*2)
    a("buffer_load_dword v245, v101, s[56:59], 0 offen")
    ptr_srd(a, 56, 50, D*F*2)
    a("buffer_load_dword v246, v101, s[56:59], 0 offen")
    a(f"s_load_dwordx2 s[56:57], s[0:1], {KA_WD}")
    a(f"s_load_dwordx2 s[58:59], s[0:1], {KA_H}")
    a("s_lshr_b32 s40, s2, 3")
    a("s_mul_i32 s40, s40, 43")
    a(f"s_mul_i32 s41, s{S_W}, 11")
    a("s_add_u32 s40, s40, s41")
    a("v_lshrrev_b32 v103, 2, v2")
    a("v_add_u32 v103, s40, v103")
    a("v_lshlrev_b32 v103, 10, v103")
    a("v_and_b32 v104, 3, v2")
    a("v_lshl_add_u32 v103, v104, 7, v103")
    a("s_and_b32 s40, s2, 1")
    a("s_lshl_b32 s40, s40, 9")
    a("v_add_u32 v103, s40, v103")
    a("v_cmp_gt_u32 vcc, 44, v2")
    a("v_mov_b32 v104, 0x7ff00000")
    a("s_waitcnt lgkmcnt(0)")
    a("v_cndmask_b32 v103, v104, v103, vcc")
    a("s_mov_b32 s40, s56")
    a("s_mov_b32 s41, s57")
    a("s_mov_b32 s42, s58")
    a("s_mov_b32 s43, s59")
    ptr_srd(a, 56, 40, F*D*2)
    a("buffer_load_dword v247, v103, s[56:59], 0 offen")
    ptr_srd(a, 56, 42, D*S*2)
    a("s_lshl_b32 s40, s2, 13")
    a(f"s_lshl_b32 s41, s{S_W}, 11")
    a("s_add_u32 s40, s40, s41")
    a("v_lshl_add_u32 v105, v2, 7, s40")
    a("v_cmp_gt_u32 vcc, 16, v2")
    a("v_mov_b32 v104, 0x7ff00000")
    a.nop(1)
    a("v_cndmask_b32 v105, v104, v105, vcc")
    a("buffer_load_dword v248, v105, s[56:59], 0 offen")
    a(f"s_lshl_b32 s40, s{S_RB2}, 6")
    a(f"s_lshl_b32 s41, s{S_W}, 4")
    a("s_add_u32 s40, s40, s41")
    a("v_add_u32 v105, s40, v3")
    a("v_lshlrev_b32 v105, 10, v105")
    a(f"s_lshl_b32 s40, s{S_CB}, 7")
    a("v_add_u32 v105, s40, v105")
    a("v_cmp_gt_u32 vcc, 16, v2")
    a.nop(2)
    a("v_cndmask_b32 v105, v104, v105, vcc")
    a(f"buffer_load_dword v249, v105, s[{R_Q}:{R_Q+3}], 0 offen")

def path_X(a):
    ptr_srd(a, R_K, 42, S*D*2)
    ptr_srd(a, R_V, 44, S*D*2)
    ptr_srd(a, R_SK, 46, D*4*2)
    a("s_lshr_b32 s56, s2, 3")
    a("s_and_b32 s57, s2, 7")
    a("v_and_b32 v1, 7, v0")
    a("v_lshrrev_b32 v5, 3, v0")
    a("s_lshl_b32 s58, s56, 16")
    a("s_lshl_b32 s59, s57, 7")
    a("s_add_u32 s58, s58, s59")
    a("v_lshlrev_b32 v6, 11, v5")
    a("v_lshl_add_u32 v6, v1, 4, v6")
    a("v_add_u32 v6, s58, v6")
    for i in range(5):
        a(f"v_add_u32 v{44+i}, {(i-3)*1024 & 0xffffffff}, v6")
    for i in range(5):
        a(f"buffer_load_dwordx4 {vr(8+4*i,4)}, v{44+i}, s[{R_K}:{R_K+3}], 0 offen")
    a(f"buffer_load_dwordx4 v[28:31], v6, s[{R_V}:{R_V+3}], 0 offen")
    a(f"buffer_load_dwordx4 v[32:35], v6, s[{R_V}:{R_V+3}], 0 offen offset:1024")
    a("s_lshl_b32 s59, s57, 9")
    a("v_lshlrev_b32 v7, 6, v1")
    a("v_add_u32 v7, s59, v7")
    for i in range(4):
        a(f"buffer_load_dwordx4 {vr(52+4*i,4)}, v7, s[{R_SK}:{R_SK+3}], 0 offen offset:{16*i}")
    a("s_lshl_b32 s59, s2, 13")
    a(f"s_lshl_b32 s58, s{S_W}, 11")
    a("s_add_u32 s59, s59, s58")
    a("v_lshl_add_u32 v49, v2, 4, s59")
    a(f"buffer_load_dwordx4 v[36:39], v49, s[{R_Q}:{R_Q+3}], 0 offen")
    a(f"buffer_load_dwordx4 v[40:43], v49, s[{R_Q}:{R_Q+3}], 0 offen offset:1024")
    lab = a.newlabel("Lw0")
    a(f"s_or_b32 s56, s2, s{S_W}")
    a("s_cmp_lg_u32 s56, 0")
    a(f"s_cbranch_scc1 {lab}")
    a("s_memrealtime s[56:57]")
    a("s_waitcnt lgkmcnt(0)")
    a(f"s_or_b32 s{S_NONCE}, s56, 1")
    a("v_mov_b32 v50, 0")
    a(f"v_mov_b32 v51, s{S_NONCE}")
    a("s_mov_b64 exec, 1")
    a(f"buffer_store_dword v51, v50, s[{R_DBG}:{R_DBG+3}], 0 offen sc1")
    a("s_mov_b64 exec, -1")
    a.label(lab)
    S_WS2, S_WF = S_A, S_B
    a(f"s_and_b32 s{S_WS2}, s{S_W}, 1")
    a(f"s_lshr_b32 s{S_WF}, s{S_W}, 1")
    VRQ = [[212 + 2*s + ks for ks in range(2)] for s in range(3)]
    VRW = [[[218 + 6*s + 3*gu + t for t in range(3)] for gu in range(2)] for s in range(3)]
    a("v_lshrrev_b32 v6, 1, v3")
    a(f"s_lshl_b32 s56, s{S_WS2}, 13")
    a(f"s_add_u32 s56, s56, {F1_QBASE}")
    for ks in range(2):
        a(f"v_add_u32 v7, {4*ks}, v4")
        a("v_xor_b32 v7, v7, v6")
        a("v_lshlrev_b32 v7, 4, v7")
        a("v_lshl_add_u32 v7, v3, 7, v7")
        a(f"v_add_u32 v{VRQ[0][ks]}, s56, v7")
        for s in (1, 2):
            a(f"v_add_u32 v{VRQ[s][ks]}, {s*F1_QSLOT}, v{VRQ[0][ks]}")
    tr_lane192(a, 6, 7, 50, 51)
    a(f"s_mul_i32 s56, s{S_WF}, 6")
    for t in range(3):
        a(f"s_add_u32 s57, s56, {2*t}")
        a("v_xor_b32 v50, s57, v7")
        a(f"v_lshl_add_u32 v{VRW[0][0][t]}, v50, 4, v6")
        for s in range(3):
            for gu in range(2):
                if s == 0 and gu == 0: continue
                a(f"v_add_u32 v{VRW[s][gu][t]}, {s*F1_WSLOT + gu*12288}, v{VRW[0][0][t]}")
    ACC = 116
    FS = [8, 48]
    for i in range(96):
        a(f"v_mov_b32 v{ACC+i}, 0")
    a("v_lshrrev_b32 v88, 2, v5")
    a("v_sub_u32 v88, 7, v88")
    a("v_xor_b32 v88, v88, v1")
    a("v_lshlrev_b32 v88, 4, v88")
    a("v_and_b32 v89, 3, v5")
    a("v_lshlrev_b32 v89, 2, v89")
    a("v_sub_u32 v89, 12, v89")
    a("v_add_u32 v88, v88, v89")
    a("v_lshl_add_u32 v88, v1, 10, v88")
    a(f"v_add_u32 v88, {L_CONV}, v88")
    a("s_mov_b32 s40, 0x05040100")
    a("s_mov_b32 s41, 0x07060302")
    stamp(a)
    a(f"s_waitcnt vmcnt({2 + NPF})")
    stamp(a)
    for row in range(2):
        R = 90 + 8*row
        k3, k2, k1, k0 = 20 + 4*row, 16 + 4*row, 12 + 4*row, 8 + 4*row
        for m in range(4):
            for half in range(2):
                e = 2*m + half
                sel = "s40" if half == 0 else "s41"
                a(f"v_perm_b32 v{68+2*e}, v{k2+m}, v{k3+m}, {sel}")
                a(f"v_perm_b32 v{69+2*e}, v{k0+m}, v{k1+m}, {sel}")
        for e in range(8):
            a(f"v_dot2_f32_bf16 v{R+e}, v{68+2*e}, v{52+2*e}, 0")
        for e in range(8):
            a(f"v_dot2_f32_bf16 v{R+e}, v{69+2*e}, v{53+2*e}, v{R+e}")
        V = 28 + 4*row
        for m in range(4):
            a(f"v_lshlrev_b32 v{68+2*m}, 16, v{V+m}")
            a(f"v_and_b32 v{69+2*m}, 0xffff0000, v{V+m}")
        for e in range(8):
            a(f"v_mul_f32 v{R+e}, v{R+e}, v{68+e}")
    for e in range(8):
        a(f"v_cvt_pk_bf16_f32 v{68+e}, v{98+e}, v{90+e}")
    for e in range(8):
        a(f"ds_write_b32 v88, v{68+e} offset:{e*128}")
    a(f"s_waitcnt vmcnt({NPF})")
    a("v_mov_b32 v76, 0x3f803f80")
    for row in range(2):
        Q = 36 + 4*row
        a("v_mov_b32 v77, 0")
        for m in range(4):
            a(f"v_dot2_f32_bf16 v77, v{Q+m}, v76, v77")
        a.nop(3)
        wave_sum64(a, 77, 56)
        a("v_mul_f32 v77, 0x3b000000, v77")
        for m in range(4):
            a(f"v_lshlrev_b32 v{78+2*m}, 16, v{Q+m}")
            a(f"v_and_b32 v{79+2*m}, 0xffff0000, v{Q+m}")
        for e in range(8):
            a(f"v_sub_f32 v{78+e}, v{78+e}, v77")
        a("v_mul_f32 v86, v78, v78")
        for e in range(1, 8):
            a(f"v_fmac_f32 v86, v{78+e}, v{78+e}")
        wave_sum64(a, 86, 56)
        a(f"v_mov_b32 v{107+2*row}, 0x3727c5ac")
        a(f"v_fmac_f32 v{107+2*row}, 0x3b000000, v86")
        a(f"v_rsq_f32 v{107+2*row}, v{107+2*row}")
        a(f"v_mov_b32 v{106+2*row}, v77")
    a("s_lshl_b32 s59, s2, 6")
    a(f"s_lshl_b32 s58, s{S_W}, 4")
    a("s_add_u32 s59, s59, s58")
    a(f"s_add_u32 s59, s59, {WS_STATS}")
    a("v_mov_b32 v110, s59")
    a("s_mov_b64 exec, 1")
    a(f"buffer_store_dwordx4 v[106:109], v110, s[{R_WS}:{R_WS+3}], 0 offen sc1")
    a("s_mov_b64 exec, -1")
    lab = a.newlabel("Lnn")
    a(f"s_cmp_lg_u32 s{S_W}, 0")
    a(f"s_cbranch_scc1 {lab}")
    a(f"v_mov_b32 v111, {L_NON}")
    for i in range(4): a(f"v_mov_b32 v{112+i}, 0")
    a("ds_write_b128 v111, v[112:115] offset:16")
    a("ds_write_b128 v111, v[112:115] offset:32")
    a("ds_write_b128 v111, v[112:115] offset:48")
    a("v_mov_b32 v111, 0")
    a(f"buffer_load_dword v243, v111, s[{R_DBG}:{R_DBG+3}], 0 offen sc1")
    a.label(lab)
    a("s_waitcnt lgkmcnt(0)")
    stamp(a)
    a("s_barrier")
    stamp(a)
    a("v_lshrrev_b32 v5, 3, v2")
    a("v_and_b32 v1, 7, v2")
    a(f"s_lshl_b32 s56, s{S_W}, 4")
    a("v_add_u32 v5, s56, v5")
    for e in range(2):
        a(f"v_add_u32 v6, {8*e}, v5")
        a("v_lshrrev_b32 v7, 3, v6")
        a("v_xor_b32 v7, v7, v1")
        a("v_lshlrev_b32 v7, 4, v7")
        a("v_lshl_add_u32 v7, v6, 7, v7")
        a(f"v_add_u32 v7, {L_CONV}, v7")
        a(f"ds_read_b128 {vr(88+4*e,4)}, v7")
    def acc(st, t, gu): return ACC + ((st*3 + t)*2 + gu)*4
    def fq(s, st): return FS[s] + 4*st
    def fw(s, gu, t): return FS[s] + 16 + (gu*3 + t)*4
    def reads(slot, ks, s):
        r = []
        for t in range(3):
            for gu in range(2):
                for hf in range(2):
                    r.append(f"ds_read_b64_tr_b16 {vr(fw(s, gu, t) + 2*hf, 2)}, v{VRW[slot][gu][t]} offset:{(32*ks + 4*hf)*192}")
        q = [f"ds_read_b128 {vr(fq(s, st), 4)}, v{VRQ[slot][ks]} offset:{st*2048}" for st in range(4)]
        return q + r
    for x in reads(0, 0, 0): a(x)
    a("s_lshr_b32 s56, s2, 3")
    a("s_and_b32 s57, s2, 7")
    a("s_lshl_b32 s59, s57, 18")
    a("s_lshl_b32 s58, s56, 7")
    a("s_sub_u32 s59, s59, s58")
    a(f"s_add_u32 s59, s59, {WS_KVT + 1984*2}")
    a("v_lshlrev_b32 v96, 12, v5")
    a("v_lshl_add_u32 v96, v1, 4, v96")
    a("v_add_u32 v96, s59, v96")
    a("v_add_u32 v97, 32768, v96")
    a("s_waitcnt lgkmcnt(0)")
    a(f"buffer_store_dwordx4 v[88:91], v96, s[{R_WS}:{R_WS+3}], 0 offen sc1")
    a(f"buffer_store_dwordx4 v[92:95], v97, s[{R_WS}:{R_WS+3}], 0 offen sc1")
    a(f"s_load_dwordx2 s[56:57], s[0:1], {KA_WD}")
    a(f"s_load_dwordx2 s[58:59], s[0:1], {KA_H}")
    a("s_lshr_b32 s40, s2, 3")
    a("s_mul_i32 s40, s40, 43")
    a(f"s_mul_i32 s41, s{S_W}, 11")
    a("s_add_u32 s40, s40, s41")
    a("v_lshrrev_b32 v244, 2, v2")
    a("v_add_u32 v244, s40, v244")
    a("v_lshlrev_b32 v244, 10, v244")
    a("v_and_b32 v245, 3, v2")
    a("v_lshl_add_u32 v244, v245, 7, v244")
    a("s_and_b32 s40, s2, 1")
    a("s_lshl_b32 s40, s40, 9")
    a("v_add_u32 v244, s40, v244")
    a("v_cmp_gt_u32 vcc, 44, v2")
    a("v_mov_b32 v246, 0x7ff00000")
    a("s_lshl_b32 s40, s2, 13")
    a(f"s_lshl_b32 s41, s{S_W}, 11")
    a("s_add_u32 s40, s40, s41")
    a("v_cndmask_b32 v244, v246, v244, vcc")
    a("v_lshl_add_u32 v245, v2, 7, s40")
    a("v_cmp_gt_u32 vcc, 16, v2")
    a("s_waitcnt lgkmcnt(0)")
    a.nop(1)
    a("v_cndmask_b32 v245, v246, v245, vcc")
    ptr_srd(a, R_WDX, 56, F*D*2)
    ptr_srd(a, R_V, 58, D*S*2)
    def mfmas(s):
        m = []
        for t in range(3):
            for gu in range(2):
                for st in range(4):
                    m.append(f"v_mfma_f32_16x16x32_bf16 {vr(acc(st,t,gu),4)}, {vr(fw(s,gu,t),4)}, {vr(fq(s,st),4)}, {vr(acc(st,t,gu),4)}")
        return m
    def part(s_cur, nxt):
        a("s_waitcnt lgkmcnt(0)")
        interleave(a, mfmas(s_cur), spread(24, nxt, 0, 1))
    a(f"s_mov_b32 s{S_JJ}, 0")
    a.label("Lx_f1_loop")
    for u in range(3):
        part(0, reads(u, 1, 1))
        a("s_waitcnt lgkmcnt(0)")
        if u == 1:
            a("s_waitcnt vmcnt(0)")
            lab = a.newlabel("Lxn")
            a(f"s_or_b32 s56, s{S_W}, s{S_JJ}")
            a("s_cmp_lg_u32 s56, 0")
            a(f"s_cbranch_scc1 {lab}")
            a(f"v_mov_b32 v88, {L_NON}")
            a(f"s_cmp_lg_u32 s{S_NONCE}, 0")
            a(f"v_mov_b32 v89, s{S_NONCE}")
            l2 = a.newlabel("Lxn")
            a(f"s_cbranch_scc1 {l2}")
            a("v_mov_b32 v89, v243")
            a.label(l2)
            a("ds_write_b32 v88, v89")
            a("s_waitcnt lgkmcnt(0)")
            a.label(lab)
            lab = a.newlabel("Lxp")
            a(f"s_cmp_lg_u32 s{S_JJ}, 1")
            a(f"s_cbranch_scc1 {lab}")
            a(f"buffer_load_dword v247, v244, s[{R_WDX}:{R_WDX+3}], 0 offen")
            a.label(lab)
        a("s_barrier")
        part(1, reads((u + 1) % 3, 0, 0))
        if u == 1:
            a(f"s_cmp_eq_u32 s{S_JJ}, 2")
            a("s_cbranch_scc1 Lx_f1_done")
    a(f"s_add_u32 s{S_JJ}, s{S_JJ}, 1")
    a("s_branch Lx_f1_loop")
    a.label("Lx_f1_done")
    a("s_waitcnt lgkmcnt(0)")
    stamp(a)
    CSD, STR = 8, 32
    a("s_setprio 3")
    a(f"v_mov_b32 v64, {L_NON}")
    a("ds_read_b32 v65, v64")
    a(f"s_mul_i32 s56, s{S_WF}, 192")
    a(f"s_add_u32 s56, s56, {L_CS}")
    a("v_lshl_add_u32 v6, v4, 4, s56")
    for gu in range(2):
        for t in range(3):
            a(f"ds_read_b128 {vr(CSD + (gu*3+t)*4, 4)}, v6 offset:{gu*384 + t*64}")
    a(f"s_lshl_b32 s56, s{S_WS2}, 9")
    a(f"s_add_u32 s56, s56, {L_ST}")
    a("v_lshl_add_u32 v6, v3, 3, s56")
    for st in range(4):
        a(f"ds_read_b64 {vr(STR+2*st,2)}, v6 offset:{st*128}")
    c1 = 2.0 * (2.0 / 3.141592653589793) ** 0.5 * 1.4426950408889634
    c2 = c1 * 0.044715
    a(f"v_mov_b32 v40, 0x{f2u(-c1):08x}")
    a(f"v_mov_b32 v41, 0x{f2u(-c2):08x}")
    a(f"s_lshl_b32 s56, s{S_RB}, 1")
    a(f"s_add_u32 s56, s56, s{S_WS2}")
    a("s_mov_b32 s58, s56")
    a("s_mul_i32 s56, s56, 43")
    a(f"s_mul_i32 s57, s{S_SL}, 3")
    a("s_add_u32 s56, s56, s57")
    a("s_lshl_b32 s56, s56, 12")
    a(f"s_add_u32 s56, s56, {WS_HF}")
    a("v_and_b32 v42, 1, v4")
    a("v_lshlrev_b32 v42, 10, v42")
    a("v_lshrrev_b32 v43, 1, v4")
    a("v_lshl_add_u32 v42, v43, 8, v42")
    a("v_lshl_add_u32 v42, v3, 4, v42")
    a("v_add_u32 v42, s56, v42")
    S_FH = 60
    a("s_lshl_b32 s58, s58, 8")
    a(f"s_lshl_b32 s57, s{S_SL}, 1")
    a(f"s_add_u32 s57, s57, s{S_WF}")
    a("s_lshl_b32 s57, s57, 2")
    a("s_add_u32 s58, s58, s57")
    a(f"s_add_u32 s{S_FH}, s58, {WS_FLAG + FL_H*128}")
    a("s_waitcnt lgkmcnt(0)")
    a(f"v_readfirstlane_b32 s{S_NONCE}, v65")
    T = 44
    for st in range(4):
        a(f"v_rcp_f32 v{64+st}, v{STR+2*st+1}")
        a(f"v_sub_f32 v{STR+2*st}, 0, v{STR+2*st}")
    for t in range(3):
        a(f"s_mul_i32 s56, s{S_WF}, 3")
        a(f"s_add_u32 s56, s56, {t}")
        a("s_lshr_b32 s57, s56, 1")
        a("s_and_b32 s56, s56, 1")
        a("s_lshl_b32 s56, s56, 9")
        a("s_lshl_b32 s59, s57, 12")
        a("s_add_u32 s56, s56, s59")
        a(f"s_mul_i32 s59, s{S_SL}, 3")
        a("s_add_u32 s59, s59, s57")
        a("s_cmp_lt_u32 s59, 43")
        a("s_cselect_b32 s56, s56, 0x7ff00000")
        for p in range(2):
            O = 48 + 4*((t*2 + p) % 4)
            for sti in range(2):
                st = 2*p + sti
                nm, rs, istd = STR + 2*st, STR + 2*st + 1, 64 + st
                g0, u0 = acc(st, t, 0), acc(st, t, 1)
                cg, cu = CSD + t*4, CSD + (3 + t)*4
                for j in range(4): a(f"v_fmac_f32 v{g0+j}, v{nm}, v{cg+j}")
                for j in range(4): a(f"v_fmac_f32 v{u0+j}, v{nm}, v{cu+j}")
                for j in range(4): a(f"v_mul_f32 v{g0+j}, v{rs}, v{g0+j}")
                for j in range(4): a(f"v_mul_f32 v{T+j}, v{g0+j}, v{g0+j}")
                for j in range(4): a(f"v_fma_f32 v{T+j}, v{T+j}, v41, v40")
                for j in range(4): a(f"v_mul_f32 v{T+j}, v{T+j}, v{g0+j}")
                for j in range(4): a(f"v_exp_f32 v{T+j}, v{T+j}")
                for j in range(4): a(f"v_mul_f32 v{u0+j}, v{u0+j}, v{g0+j}")
                for j in range(4): a(f"v_fma_f32 v{T+j}, v{T+j}, v{istd}, v{istd}")
                for j in range(4): a(f"v_rcp_f32 v{T+j}, v{T+j}")
                a.nop(1)
                for j in range(4): a(f"v_mul_f32 v{u0+j}, v{u0+j}, v{T+j}")
                a(f"v_cvt_pk_bf16_f32 v{O+2*sti}, v{u0}, v{u0+1}")
                a(f"v_cvt_pk_bf16_f32 v{O+2*sti+1}, v{u0+2}, v{u0+3}")
            a.nop(2)
            a(f"v_permlane16_swap_b32 v{O}, v{O+2}")
            a(f"v_permlane16_swap_b32 v{O+1}, v{O+3}")
            a(f"buffer_store_dwordx4 {vr(O,4)}, v42, s[{R_WS}:{R_WS+3}], s56 offen offset:{p*2048} sc1")
    stamp(a)
    a("s_setprio 0")
    a("s_barrier")
    S_DH, S_KH = S_A, S_B
    a(f"s_and_b32 s{S_DH}, s{S_W}, 1")
    a(f"s_lshr_b32 s{S_KH}, s{S_W}, 1")
    tr_lane128(a, 7, 6, 16, 19)
    VRA = [20, 21]
    for e in range(2):
        a(f"s_lshl_b32 s57, s{S_DH}, 2")
        a(f"s_add_u32 s57, s57, {2*e}")
        a("v_xor_b32 v16, s57, v6")
        a(f"v_lshl_add_u32 v{VRA[e]}, v16, 4, v7")
    a(f"s_mul_i32 s56, s{S_KH}, {NRES*4096}")
    a(f"v_add_u32 v22, s56, v{VRA[0]}")
    a(f"v_add_u32 v23, s56, v{VRA[1]}")
    WREG = 116
    for i in range(NRES):
        for dt in range(2):
            for hf in range(2):
                a(f"ds_read_b64_tr_b16 {vr(WREG + (i*2+dt)*4 + 2*hf, 2)}, v{22+dt} offset:{i*4096 + hf*512}")
        if i % 3 == 2:
            a("s_waitcnt lgkmcnt(4)")
        if i == 2:
            a("s_waitcnt vmcnt(0)")
            publish(a, 68, [S_FH])
            stamp(a)
    a("v_lshrrev_b32 v5, 3, v2")
    a("v_and_b32 v7, 7, v2")
    a("v_and_b32 v6, 2, v5")
    a(f"s_and_b32 s56, s{S_W}, 1")
    a("s_lshl_b32 s56, s56, 2")
    a("v_or_b32 v6, s56, v6")
    a("v_xor_b32 v6, v6, v7")
    a("v_lshlrev_b32 v6, 4, v6")
    a("v_lshl_add_u32 v26, v5, 10, v6")
    a(f"s_lshl_b32 s56, s{S_CB}, 7")
    a(f"s_lshl_b32 s57, s{S_W}, 13")
    a("s_add_u32 s56, s56, s57")
    a("v_add_u32 v26, s56, v26")
    a(f"s_lshr_b32 s47, s{S_W}, 1")
    a(f"s_and_b32 s48, s{S_W}, 1")
    a("s_mul_i32 s50, s47, 22")
    a("s_add_u32 s50, s50, s48")
    a("s_lshl_b32 s51, s47, 13")
    a("s_lshl_b32 s52, s48, 12")
    a("s_add_u32 s51, s51, s52")
    a(f"s_add_u32 s51, s51, {F2_HB}")
    a(f"s_mul_i32 s53, s{S_RB2}, 43")
    a("s_add_u32 s53, s53, s50")
    a("s_lshl_b32 s53, s53, 12")
    a(f"s_add_u32 s53, s53, {WS_HF}")
    a("v_lshlrev_b32 v27, 4, v2")
    a(f"s_lshl_b32 s56, s{S_RB2}, 8")
    a(f"s_add_u32 s56, s56, {WS_FLAG + FL_H*128}")
    a("v_cmp_gt_u32 vcc, 30, v2")
    a("v_mov_b32 v6, 0")
    a.nop(1)
    a("v_cndmask_b32 v6, v6, v2, vcc")
    a("v_lshl_add_u32 v28, v6, 2, s56")
    a(f"s_lshl_b32 s56, s{S_KH}, 13")
    a(f"s_add_u32 s56, s56, {F2_HB}")
    a("v_lshl_add_u32 v30, v2, 4, s56")
    a(f"v_add_u32 v31, {3*F2_SLOT}, v30")
    a(f"s_mul_i32 s56, s{S_KH}, {7*4096}")
    a(f"s_add_u32 s56, s56, {F2_LW}")
    a(f"v_add_u32 v24, s56, v{VRA[0]}")
    a(f"v_add_u32 v25, s56, v{VRA[1]}")
    a(f"buffer_load_dword v29, v28, s[{R_WS}:{R_WS+3}], 0 offen sc1")
    a("s_waitcnt lgkmcnt(0)")
    a(f"s_lshl_b32 s56, s{S_W}, 2")
    a(f"s_add_u32 s56, s56, {L_CF + 16}")
    a("v_mov_b32 v8, s56")
    a("v_mov_b32 v9, 1")
    a("ds_write_b32 v8, v9")
    a(f"v_mov_b32 v8, {L_CF + 16}")
    lab = a.newlabel("Lxs"); out = a.newlabel("Lxs")
    a("s_mov_b32 s40, 0")
    a.label(lab)
    a("ds_read_b128 v[12:15], v8")
    a("s_add_u32 s40, s40, 1")
    a("s_waitcnt lgkmcnt(0)")
    a("v_and_b32 v12, v12, v13")
    a("v_and_b32 v14, v14, v15")
    a("v_and_b32 v12, v12, v14")
    a.nop(1)
    a("v_readfirstlane_b32 s41, v12")
    a(f"s_cmp_ge_u32 s40, {POLL_MAX*10}")
    a(f"s_cbranch_scc1 {out}")
    a("s_cmp_eq_u32 s41, 0")
    a(f"s_cbranch_scc1 {lab}")
    a.label(out)
    stamp(a)
    a(f"buffer_load_dword v29, v28, s[{R_WS}:{R_WS+3}], 0 offen sc1")
    for q in range(14):
        kh, m = q // 7, q % 7
        ks = 22*kh + NRES + m
        a(f"s_lshl_b32 s57, s{S_W}, 10")
        a(f"s_add_u32 m0, s57, {F2_LW + q*4096}")
        a(f"s_mov_b32 s56, {ks*32768}")
        a(f"buffer_load_dwordx4 v26, s[{R_WDX}:{R_WDX+3}], s56 offen lds")
    final_loads(a)
    a("s_waitcnt vmcnt(16)")
    lab = a.newlabel("Lxh")
    a(f"v_cmp_ne_u32 vcc, s{S_NONCE}, v29")
    a(f"s_cbranch_vccz {lab}")
    poll(a, 28, 29)
    a.label(lab)
    stamp(a)
    for I in range(4):
        for st in range(4):
            a(f"s_add_u32 m0, s51, {I*F2_SLOT + st*1024}")
            a(f"s_add_u32 s56, s53, {I*8192 + st*1024}")
            a(f"buffer_load_dwordx4 v27, s[{R_WS}:{R_WS+3}], s56 offen lds")
    ACC2 = 36
    def acc2(dt, st): return ACC2 + (dt*4 + st)*4
    FB = [68, 84, 100]
    def reads2(p):
        I, e = p // 2, p % 2
        if p > 21: return []
        slot = I % F2_NSLOT
        s = p % 3
        vb, off = (30, slot*F2_SLOT) if slot < 3 else (31, (slot-3)*F2_SLOT)
        r = [f"ds_read_b128 {vr(FB[s]+4*st,4)}, v{vb} offset:{off + e*4096 + st*1024}" for st in range(4)]
        if p >= NRES:
            for dt in range(2):
                for hf in range(2):
                    r.append(f"ds_read_b64_tr_b16 {vr(FA2[p % 3]+4*dt+2*hf,2)}, v{24+dt} offset:{(p-NRES)*4096 + hf*512}")
        return r
    FA2 = [8, 244, 16]
    NI = 11
    a("s_waitcnt vmcnt(8)")
    a("s_barrier")
    stamp(a)
    for x in reads2(0): a(x)
    for x in reads2(1): a(x)
    prev_n = len(reads2(1))
    for I in range(NI):
        if 1 <= I <= 7:
            if I <= 2: a(f"s_waitcnt vmcnt({4*(2-I)})")
            if I == 6: a("s_waitcnt vmcnt(0)")
            a("s_barrier")
        for e in range(2):
            p = 2*I + e
            nxt = reads2(p + 2)
            a(f"s_waitcnt lgkmcnt({prev_n})")
            lab = None
            if p == 21:
                lab = a.newlabel("Lg")
                a(f"s_cmp_eq_u32 s{S_KH}, 1")
                a(f"s_cbranch_scc1 {lab}")
            m = []
            for dt in range(2):
                areg = (WREG + (p*2+dt)*4) if p < NRES else (FA2[p % 3] + 4*dt)
                for st in range(4):
                    c = "0" if p == 0 else vr(acc2(dt, st), 4)
                    m.append(f"v_mfma_f32_16x16x32_bf16 {vr(acc2(dt,st),4)}, {vr(areg,4)}, {vr(FB[p % 3]+4*st,4)}, {c}")
            interleave(a, m, spread(8, nxt, 0, 1))
            if lab: a.label(lab)
            prev_n = len(nxt)
    stamp(a)
    a.nop(8)
    a("s_barrier")
    a(f"s_mul_i32 s56, s{S_KH}, {64*F2_PP}")
    a(f"s_lshl_b32 s57, s{S_DH}, 7")
    a("s_add_u32 s56, s56, s57")
    a(f"v_mul_u32_u24 v6, {F2_PP}, v3")
    a("v_lshl_add_u32 v6, v4, 4, v6")
    a("v_add_u32 v6, s56, v6")
    for dt in range(2):
        for st in range(4):
            a(f"ds_write_b128 v6, {vr(acc2(dt,st),4)} offset:{st*16*F2_PP + dt*64}")
    a("s_branch Lfinal")
def cap(a, fn):
    t = A(); t.uid = a.uid
    fn(t)
    a.uid = t.uid
    return [x.strip() for x in t.l]

def lds_flag_wait(a, vaddr, vt, val, b128=False):
    lab = a.newlabel("Lcf"); out = a.newlabel("Lcf")
    a("s_mov_b32 s40, 0")
    a.label(lab)
    if b128:
        a(f"ds_read_b128 {vr(vt,4)}, v{vaddr}")
    else:
        a(f"ds_read_b32 v{vt}, v{vaddr}")
    a("s_add_u32 s40, s40, 1")
    a("s_waitcnt lgkmcnt(0)")
    if b128:
        a(f"v_min_u32 v{vt}, v{vt}, v{vt+1}")
        a(f"v_min_u32 v{vt+2}, v{vt+2}, v{vt+3}")
        a(f"v_min_u32 v{vt}, v{vt}, v{vt+2}")
        a.nop(1)
    a(f"v_readfirstlane_b32 s41, v{vt}")
    a(f"s_cmp_ge_u32 s40, {POLL_MAX*10}")
    a(f"s_cbranch_scc1 {out}")
    a(f"s_cmp_lt_u32 s41, {val}")
    a(f"s_cbranch_scc1 {lab}")
    a.label(out)

def path_Y(a):
    a.label("LY")
    asmlib.Stamps.n = 1
    S_Y = S_A
    a(f"s_sub_u32 s{S_Y}, s{S_W}, 4")
    a(f"s_cmp_lt_u32 s{S_Y}, 2")
    a("s_cselect_b32 s56, s48, s50")
    a("s_cselect_b32 s57, s49, s51")
    ptr_srd(a, R_W, 56, D*F*2)
    VQ = [84, 85, 86, 87]; VW = [88, 89, 90, 91, 92, 93]
    a("v_lshrrev_b32 v5, 3, v2")
    a("v_and_b32 v7, 7, v2")
    a(f"s_lshl_b32 s56, s{S_RB}, 17")
    a(f"s_lshl_b32 s57, s{S_Y}, 15")
    a("s_add_u32 s56, s56, s57")
    S_QD, S_WDD, S_J0 = 44, 45, 46
    a(f"s_lshl_b32 s{S_QD}, s{S_Y}, 12")
    a(f"s_add_u32 s{S_QD}, s{S_QD}, {F1_QBASE}")
    a(f"s_lshr_b32 s{S_J0}, s{S_RB}, 1")
    def dma_src(Jn):
        a(f"s_add_u32 s47, s{S_J0}, {Jn}")
        a("s_and_b32 s47, s47, 7")
        a("s_lshl_b32 s48, s47, 7")
        a(f"s_mul_i32 s49, s47, {64*2752}")
    class Fill:
        def __init__(s, lines, n):
            s.l = list(lines); s.per = (len(s.l) + n - 1) // n if n else 0
        def step(s):
            for x in s.l[:s.per]: a(x)
            s.l = s.l[s.per:]
        def flush(s):
            for x in s.l: a(x)
            s.l = []
    def dma_q(Jn, f=None):
        slot = Jn % 3
        for e in range(4):
            a(f"s_add_u32 m0, s{S_QD}, {slot*F1_QSLOT + e*1024}")
            a.nop(1)
            a(f"buffer_load_dwordx4 v{VQ[e]}, s[{R_Q}:{R_Q+3}], s48 offen lds")
            if f: f.step()
    def dma_w(Jn, f=None):
        slot = Jn % 3
        for e in range(6):
            a(f"s_add_u32 m0, s{S_WDD}, {slot*F1_WSLOT + e*1024}")
            a.nop(1)
            a(f"buffer_load_dwordx4 v{VW[e]}, s[{R_W}:{R_W+3}], s49 offen lds")
            if f: f.step()
    def dma(Jn, fill=()):
        f = Fill(fill, 10)
        dma_src(Jn); dma_q(Jn, f); dma_w(Jn, f)
        f.flush()
    dma_src(0)
    for e in range(4):
        a(f"v_add_u32 v6, {4*e}, v4")
        a("v_and_b32 v6, 7, v6")
        a("v_xor_b32 v6, v6, v7")
        a("v_lshlrev_b32 v6, 4, v6")
        a("v_lshl_add_u32 v6, v5, 10, v6")
        a(f"v_add_u32 v{VQ[e]}, s56, v6")
        if e: a(f"v_add_u32 v{VQ[e]}, {8192*e}, v{VQ[e]}")
        a(f"s_add_u32 m0, s{S_QD}, {e*1024}")
        a.nop(1)
        a(f"buffer_load_dwordx4 v{VQ[e]}, s[{R_Q}:{R_Q+3}], s48 offen lds")
    a(f"s_lshr_b32 s56, s{S_Y}, 1")
    a(f"s_mul_i32 s{S_WDD}, s56, 12288")
    a(f"s_and_b32 s56, s{S_Y}, 1")
    a("s_mul_i32 s56, s56, 6144")
    a(f"s_add_u32 s{S_WDD}, s{S_WDD}, s56")
    a(f"s_and_b32 s56, s{S_Y}, 1")
    a("s_mul_i32 s56, s56, 384")
    a(f"s_mul_i32 s57, s{S_SL}, 192")
    a("s_mov_b32 s58, 43691")
    a("s_movk_i32 s59, 2752")
    for e in range(6):
        a("v_add_u32 v6, s56, v2")
        if e: a(f"v_add_u32 v6, {64*e}, v6")
        a("v_mul_u32_u24 v7, s58, v6")
        a("v_lshrrev_b32 v7, 19, v7")
        a("v_mul_u32_u24 v8, 12, v7")
        a("v_sub_u32 v6, v6, v8")
        a("v_lshrrev_b32 v8, 2, v7")
        a("v_and_b32 v8, 2, v8")
        a("v_xor_b32 v6, v6, v8")
        a("v_lshlrev_b32 v6, 4, v6")
        a("v_mul_u32_u24 v7, s59, v7")
        a("v_add_u32 v6, v6, v7")
        a(f"v_add_u32 v{VW[e]}, s57, v6")
        a(f"s_add_u32 m0, s{S_WDD}, {e*1024}")
        a.nop(1)
        a(f"buffer_load_dwordx4 v{VW[e]}, s[{R_W}:{R_W+3}], s49 offen lds")
    stamp(a)
    def f_colsum_addr(t_):
        tr_lane192(t_, 6, 7, 8, 9)
        t_(f"s_and_b32 s56, s{S_Y}, 1")
        t_("s_mul_i32 s56, s56, 6")
        t_(f"s_lshr_b32 s57, s{S_Y}, 1")
        t_("s_mul_i32 s57, s57, 12288")
        t_(f"s_and_b32 s58, s{S_RB}, 1")
        t_(f"s_mul_i32 s58, s58, {32*192}")
        t_("s_add_u32 s57, s57, s58")
        for t in range(3):
            t_(f"s_add_u32 s59, s56, {2*t}")
            t_("v_xor_b32 v8, s59, v7")
            t_(f"v_lshl_add_u32 v{104+t}, v8, 4, v6")
            t_(f"v_add_u32 v{104+t}, s57, v{104+t}")
        t_(f"s_lshl_b32 s56, s{S_SL}, 4")
        t_(f"s_add_u32 s56, s56, s{S_RB}")
        t_("s_mul_i32 s56, s56, 768")
        t_(f"s_mul_i32 s57, s{S_Y}, 192")
        t_("s_add_u32 s56, s56, s57")
        t_(f"s_add_u32 s56, s56, {WS_CSP}")
        t_("v_lshl_add_u32 v40, v4, 4, s56")
        for i in range(4): t_(f"v_mov_b32 v{24+i}, 0x3f803f80")
    dma(1, cap(a, f_colsum_addr))
    a(f"s_load_dwordx2 s[56:57], s[0:1], {KA_H}")
    a(f"s_load_dwordx2 s[40:41], s[0:1], {KA_WD}")
    a(f"s_load_dwordx2 s[58:59], s[0:1], {KA_DD}")
    a("s_waitcnt vmcnt(10)")
    a("s_barrier")
    stamp(a)
    for t in range(3):
        for hf in range(2):
            a(f"ds_read_b64_tr_b16 {vr(12 + 4*t + 2*hf, 2)}, v{104+t} offset:{4*hf*192}")
    dma(2)
    a("s_waitcnt lgkmcnt(0)")
    ptr_srd(a, R_H, 56, D*S*2)
    ptr_srd(a, R_WD, 40, F*D*2)
    a("s_lshl_b32 s56, s2, 2")
    a(f"s_load_dword s{S_DD}, s[58:59], s56")
    for t in range(3):
        a(f"v_mfma_f32_16x16x32_bf16 {vr(28 + 4*t, 4)}, {vr(12+4*t,4)}, v[24:27], 0")
    a("s_waitcnt vmcnt(10)")
    a("s_barrier")
    a.nop(4)
    a("s_mov_b32 s56, 0x00010001")
    a("s_mov_b32 exec_lo, s56")
    a("s_mov_b32 exec_hi, s56")
    for t in range(3):
        a(f"buffer_store_dwordx4 {vr(28+4*t,4)}, v40, s[{R_WS}:{R_WS+3}], 0 offen offset:{t*64} sc1")
    a("s_mov_b64 exec, -1")
    S_FA1, S_FA2, S_FCS = 60, 61, 62
    def f_flags(t_):
        t_("s_lshr_b32 s56, s2, 4")
        t_("s_lshl_b32 s56, s56, 7")
        t_("s_and_b32 s57, s2, 15")
        t_("s_lshl_b32 s57, s57, 2")
        t_("s_add_u32 s56, s56, s57")
        t_(f"s_add_u32 s{S_FA1}, s56, {WS_FLAG + FL_AS*128}")
        t_("s_and_b32 s56, s2, 7")
        t_("s_lshl_b32 s56, s56, 7")
        t_("s_lshr_b32 s57, s2, 3")
        t_("s_lshl_b32 s57, s57, 2")
        t_("s_add_u32 s56, s56, s57")
        t_(f"s_add_u32 s{S_FA2}, s56, {WS_FLAG + FL_AK*128}")
        t_(f"s_lshl_b32 s56, s{S_SL}, 7")
        t_(f"s_lshl_b32 s57, s{S_RB}, 2")
        t_("s_add_u32 s56, s56, s57")
        t_(f"s_add_u32 s{S_FCS}, s56, {WS_FLAG + FL_CS*128}")
    dma(3, cap(a, f_flags))
    a("s_waitcnt vmcnt(10)")
    a("s_barrier")
    VPA, VPT = 100, 101
    def f_poll(t_):
        t_("s_lshr_b32 s58, s2, 5")
        t_("s_lshl_b32 s58, s58, 7")
        t_(f"s_add_u32 s58, s58, {WS_FLAG + FL_AK*128}")
        t_("v_and_b32 v6, 31, v2")
        t_(f"v_lshl_add_u32 v{VPA}, v6, 2, s58")
        t_(f"s_lshl_b32 s56, s{S_RB}, 7")
        t_(f"s_add_u32 s56, s56, {WS_FLAG + FL_AS*128}")
        t_(f"s_lshl_b32 s57, s{S_SL}, 7")
        t_(f"s_add_u32 s57, s57, {WS_FLAG + FL_CS*128}")
        t_("v_mov_b32 v6, s56")
        t_("v_mov_b32 v7, s57")
        t_("v_cmp_le_u32 vcc, 16, v2")
        t_.nop(2)
        t_("v_cndmask_b32 v6, v6, v7, vcc")
        t_("v_lshl_add_u32 v6, v3, 2, v6")
        t_("v_cmp_gt_u32 vcc, 32, v2")
        t_.nop(2)
        t_(f"v_cndmask_b32 v{VPA}, v{VPA}, v6, vcc")
    a(f"v_mov_b32 v8, {L_NON}")
    a("ds_read_b32 v9, v8")
    a("s_waitcnt lgkmcnt(0)")
    a(f"v_readfirstlane_b32 s{S_NONCE}, v9")
    lab = a.newlabel("Lyn")
    a(f"s_cmp_lg_u32 s{S_NONCE}, 0")
    a(f"s_cbranch_scc1 {lab}")
    get_nonce(a, 10)
    a(f"v_mov_b32 v9, s{S_NONCE}")
    a("ds_write_b32 v8, v9")
    a("s_waitcnt lgkmcnt(0)")
    a.label(lab)
    lab = a.newlabel("Lyp")
    a(f"s_cmp_lg_u32 s{S_Y}, 0")
    a(f"s_cbranch_scc1 {lab}")
    publish(a, 8, [S_FA1, S_FA2, S_FCS])
    a.label(lab)
    dma(4, cap(a, f_poll))
    a("s_waitcnt vmcnt(10)")
    a("s_barrier")
    VWD = [102, 103]; VWDY = 107
    def f_wd(t_):
        t_("v_lshrrev_b32 v5, 3, v2")
        t_("v_and_b32 v7, 7, v2")
        t_("v_and_b32 v6, 2, v5")
        t_("v_xor_b32 v6, v6, v7")
        t_("v_xor_b32 v8, 4, v6")
        t_("v_lshlrev_b32 v6, 4, v6")
        t_("v_lshlrev_b32 v8, 4, v8")
        t_(f"v_lshl_add_u32 v{VWD[0]}, v5, 10, v6")
        t_(f"v_lshl_add_u32 v{VWD[1]}, v5, 10, v8")
        t_(f"s_lshl_b32 s56, s{S_CB}, 7")
        t_(f"v_add_u32 v{VWD[0]}, s56, v{VWD[0]}")
        t_(f"v_add_u32 v{VWD[1]}, s56, v{VWD[1]}")
        t_(f"s_and_b32 s56, s{S_Y}, 1")
        t_(f"v_cmp_eq_u32 vcc, s56, 1") if False else None
        t_(f"s_cmp_eq_u32 s56, 1")
        t_(f"s_cselect_b64 vcc, -1, 0")
        t_(f"v_cndmask_b32 v{VWDY}, v{VWD[0]}, v{VWD[1]}, vcc")
        t_("v_subrev_u32 v9, 256, v0")
        t_("v_lshrrev_b32 v6, 7, v9")
        t_("v_and_b32 v7, 127, v9")
        t_("s_lshl_b32 s56, s2, 13")
        t_("v_lshlrev_b32 v6, 12, v6")
        t_("v_lshl_add_u32 v6, v7, 4, v6")
        t_(f"v_add_u32 v{VCO}, s56, v6")
        t_(f"v_subrev_u32 v{VCO+1}, 4, v{VCO}")
    VCH, VCXA, VCXS, VCHP = 108, 116, 124, 132
    VCO = 134
    dma(5, cap(a, f_wd))
    a("s_waitcnt vmcnt(10)")
    a("s_barrier")
    dma(6)
    a("s_waitcnt vmcnt(10)")
    a("s_barrier")
    a(f"buffer_load_dword v{VPT}, v{VPA}, s[{R_WS}:{R_WS+3}], 0 offen sc1")
    dma(7)
    a("s_waitcnt vmcnt(10)")
    lab = a.newlabel("Lyq")
    a(f"v_cmp_ne_u32 vcc, s{S_NONCE}, v{VPT}")
    a(f"s_cbranch_vccz {lab}")
    poll(a, VPA, VPT)
    a.label(lab)
    a("s_barrier")
    def wd_pref(rs):
        for r in rs:
            ks = r if r < NRES else 22 + (r - NRES)
            a(f"s_lshl_b32 s56, s{S_Y}, 13")
            a(f"s_add_u32 s56, s56, {ks*32768}")
            a(f"s_lshl_b32 s57, s{S_Y}, 10")
            a(f"s_add_u32 m0, s57, {r*4096}")
            a.nop(1)
            a(f"buffer_load_dwordx4 v{VWDY}, s[{R_WD}:{R_WD+3}], s56 offen lds")
    a("v_lshlrev_b32 v8, 4, v2")
    a(f"s_mul_i32 s56, s{S_SL}, {16*768}")
    a(f"s_mul_i32 s57, s{S_Y}, 3072")
    a("s_add_u32 s56, s56, s57")
    a(f"s_add_u32 s56, s56, {WS_CSP}")
    for i in range(3):
        a(f"s_add_u32 m0, s57, {L_CONV + i*1024}")
        a(f"s_add_u32 s58, s56, {i*1024}")
        a(f"buffer_load_dwordx4 v8, s[{R_WS}:{R_WS+3}], s58 offen sc1 lds")
    a(f"s_lshl_b32 s56, s{S_RB}, 10")
    a(f"s_add_u32 s56, s56, {WS_STATS}")
    lab = a.newlabel("Lys")
    a(f"s_cmp_lg_u32 s{S_Y}, 3")
    a(f"s_cbranch_scc1 {lab}")
    a(f"s_mov_b32 m0, {L_ST}")
    a.nop(1)
    a(f"buffer_load_dwordx4 v8, s[{R_WS}:{R_WS+3}], s56 offen sc1 lds")
    a.label(lab)
    a("s_waitcnt vmcnt(0)")
    a("s_barrier")
    stamp(a)
    a(f"s_mov_b32 s56, {WS_KVT}")
    for e in range(2):
        a(f"buffer_load_dwordx4 {vr(VCH+4*e,4)}, v{VCO}, s[{R_H}:{R_H+3}], 0 offen offset:{e*2048}")
        a(f"buffer_load_dword v{VCHP+e}, v{VCO+1}, s[{R_H}:{R_H+3}], 0 offen offset:{e*2048}")
        a(f"buffer_load_dwordx4 {vr(VCXA+4*e,4)}, v{VCO}, s[{R_WS}:{R_WS+3}], s56 offen offset:{e*2048} sc1")
        a(f"buffer_load_dwordx4 {vr(VCXS+4*e,4)}, v{VCO+1}, s[{R_WS}:{R_WS+3}], s56 offen offset:{e*2048} sc1")
    lab = a.newlabel("Lyc")
    a(f"s_cmp_ge_u32 s{S_Y}, 3")
    a(f"s_cbranch_scc1 {lab}")
    a("v_lshlrev_b32 v8, 2, v9")
    a(f"v_add_u32 v10, {L_CONV}, v8")
    for r in range(16):
        a(f"ds_read_b32 v{12+r}, v10 offset:{r*768}")
    a("s_waitcnt lgkmcnt(0)")
    for r in range(1, 16):
        a(f"v_add_f32 v12, v12, v{12+r}")
    a(f"v_add_u32 v8, {L_CS}, v8")
    a("ds_write_b32 v8, v12")
    a.label(lab)
    a("s_waitcnt lgkmcnt(0)")
    a("s_barrier")
    stamp(a)
    wd_pref(range(0, 10))
    a("s_waitcnt vmcnt(10)")
    a("v_lshrrev_b32 v6, 7, v9")
    a("v_and_b32 v7, 127, v9")
    a(f"v_mul_u32_u24 v8, {C_CH}, v6")
    a(f"v_add_u32 v10, {L_CONV}, v8")
    a("v_lshl_add_u32 v8, v7, 4, v10")
    for i in range(4): a(f"v_mov_b32 v{12+i}, 0")
    a("v_cmp_eq_u32 vcc, 0, v7")
    a.nop(2)
    a(f"v_cndmask_b32 v{VCHP}, v{VCHP}, v12, vcc")
    for e in range(2):
        h = VCH + 4*e
        a(f"ds_write_b128 v8, {vr(h,4)} offset:{C_HO + 64 + e*2048}")
        a(f"v_alignbit_b32 v16, v{h}, v{VCHP+e}, 16")
        a(f"v_alignbit_b32 v17, v{h+1}, v{h}, 16")
        a(f"v_alignbit_b32 v18, v{h+2}, v{h+1}, 16")
        a(f"v_alignbit_b32 v19, v{h+3}, v{h+2}, 16")
        a(f"ds_write_b128 v8, v[16:19] offset:{C_HEV + 64 + e*2048}")
        a(f"ds_write_b128 v8, {vr(VCXA+4*e,4)} offset:{C_XO + e*2048}")
        a(f"ds_write_b128 v8, {vr(VCXS+4*e,4)} offset:{C_XE + e*2048}")
        a.nop(1)
    a("v_cmp_gt_u32 vcc, 4, v7")
    a("s_and_saveexec_b64 s[42:43], vcc")
    a(f"ds_write_b128 v8, v[12:15] offset:{C_HEV}")
    a(f"ds_write_b128 v8, v[12:15] offset:{C_HO}")
    a("s_mov_b64 exec, s[42:43]")
    a("v_cmp_gt_u32 vcc, 32, v7")
    a("s_and_saveexec_b64 s[42:43], vcc")
    a(f"ds_write_b128 v8, v[12:15] offset:{C_XO + 4096}")
    a("s_mov_b64 exec, s[42:43]")
    a("v_cmp_gt_u32 vcc, 32, v7")
    a("v_cmp_lt_u32 s[56:57], 0, v7")
    a("s_and_b64 vcc, vcc, s[56:57]")
    a("s_and_saveexec_b64 s[42:43], vcc")
    a(f"ds_write_b128 v8, v[12:15] offset:{C_XE + 4096}")
    a("s_mov_b64 exec, s[42:43]")
    a("v_cmp_eq_u32 vcc, 127, v7")
    a("s_and_saveexec_b64 s[42:43], vcc")
    a(f"v_mov_b32 v12, v{VCXA+7}")
    a(f"ds_write_b128 v10, v[12:15] offset:{C_XE + 4096}")
    a("s_mov_b64 exec, s[42:43]")
    wd_pref(range(10, 30))
    a("s_waitcnt vmcnt(0) lgkmcnt(0)")
    a("s_barrier")
    S_CH, S_HALF, S_CB0 = 44, 45, 46
    a(f"s_lshr_b32 s{S_CH}, s{S_Y}, 1")
    a(f"s_and_b32 s{S_HALF}, s{S_Y}, 1")
    a(f"s_mul_i32 s{S_CB0}, s{S_CH}, {C_CH}")
    a(f"s_add_u32 s{S_CB0}, s{S_CB0}, {L_CONV}")
    a(f"s_lshl_b32 s56, s{S_Y}, 2")
    a(f"s_add_u32 s56, s56, {L_CF}")
    a("v_mov_b32 v11, s56")
    a("s_xor_b32 s56, s56, 4")
    a("v_mov_b32 v12, s56")
    a("v_lshrrev_b32 v45, 1, v3")
    a("v_lshlrev_b32 v46, 3, v45")
    a("v_lshl_add_u32 v46, v4, 4, v46")
    a("v_and_b32 v47, 1, v3")
    a(f"v_mul_u32_u24 v48, {C_HO - C_HEV}, v47")
    a("v_add_u32 v46, v46, v48")
    a(f"s_lshl_b32 s56, s{S_HALF}, 8")
    a(f"s_add_u32 s56, s56, s{S_CB0}")
    a(f"s_add_u32 s57, s56, {C_HEV + 8}")
    a("v_add_u32 v46, s57, v46")
    a("v_lshlrev_b32 v49, 4, v4")
    a("v_lshlrev_b32 v50, 6, v45")
    a("v_sub_u32 v49, v49, v50")
    a(f"v_mul_u32_u24 v48, {(C_XE + 456) - (C_XO + 448)}, v47")
    a("v_sub_u32 v49, v49, v48")
    a(f"s_add_u32 s57, s56, {C_XE + 456}")
    a("v_add_u32 v49, s57, v49")
    stamp(a)
    VA, VB = 46, 49
    CACC = 52
    CFS = [108, 172]
    def fa(s, i): return CFS[s] + 4*i
    def fb(s, i): return CFS[s] + 32 + 4*i
    def creads(c, s):
        r = []
        for m in range(8):
            for hf in range(2):
                r.append(f"ds_read_b64 {vr(fa(s,m)+2*hf,2)}, v{VA} offset:{m*512 + c*64 + hf*8}")
            for hf in range(2):
                r.append(f"ds_read_b64 {vr(fb(s,m)+2*hf,2)}, v{VB} offset:{(7-m)*512 + c*64 + hf*8}")
        return r
    pairs = []
    for m in range(8):
        ps = [(x, m) for x in range(m)] + [(m, x) for x in range(m)] + [(m, m)]
        pairs += [p for p in ps if p[0] + p[1] <= 7]
    touched = set()
    for x in creads(0, 0): a(x)
    for c in range(4):
        s = c & 1
        nxt = creads(c + 1, s ^ 1) if c < 3 else []
        a("s_waitcnt lgkmcnt(0)")
        m = []
        for (a1, u) in pairs:
            Tt = a1 + u
            cc = vr(CACC + 4*Tt, 4) if Tt in touched else "0"
            touched.add(Tt)
            m.append(f"v_mfma_f32_16x16x32_bf16 {vr(CACC+4*Tt,4)}, {vr(fa(s,a1),4)}, {vr(fb(s,u),4)}, {cc}")
        f = [[] for _ in m]
        for k, x in enumerate(nxt):
            f[(k * 28) // 32].append(x)
        interleave(a, m, f)
    stamp(a)
    a.nop(4)
    a("v_lshlrev_b32 v5, 4, v2")
    a("v_mov_b32 v13, 2")
    a("ds_write_b32 v11, v13")
    a(f"s_lshl_b32 s56, s{S_HALF}, 12")
    a(f"s_add_u32 s56, s56, s{S_CB0}")
    a("v_add_u32 v6, s56, v5")
    a(f"s_xor_b32 s57, s{S_HALF}, 1")
    a("s_lshl_b32 s57, s57, 12")
    a(f"s_add_u32 s57, s57, s{S_CB0}")
    a("v_add_u32 v7, s57, v5")
    a("v_lshlrev_b32 v8, 4, v4")
    a("v_lshl_add_u32 v8, v47, 2, v8")
    a("v_lshl_add_u32 v8, v45, 6, v8")
    a(f"s_lshl_b32 s56, s{S_HALF}, 11")
    a(f"s_sub_u32 s56, s{S_CB0}, s56")
    a(f"s_add_u32 s56, s56, {C_XO + 2042*2 - 3*512}")
    a("v_sub_u32 v9, s56, v8")
    K = 32
    for t in range(4):
        a(f"ds_read_b32 v{K+2*t}, v9 offset:{(3-t)*512}")
        a(f"ds_read_b32 v{K+2*t+1}, v9 offset:{(3-t)*512+8}")
    lds_flag_wait(a, 12, 14, 2)
    lk0 = a.newlabel("Lr"); lk1 = a.newlabel("Lr")
    a(f"s_cmp_eq_u32 s{S_HALF}, 0")
    a(f"s_cbranch_scc0 {lk0}")
    for t in range(4):
        a(f"ds_write_b128 v6, {vr(CACC+16+4*t,4)} offset:{t*1024}")
    a(f"s_branch {lk1}")
    a.label(lk0)
    for t in range(4):
        a(f"ds_write_b128 v6, {vr(CACC+4*t,4)} offset:{t*1024}")
    a.nop(2)
    for i in range(16):
        a(f"v_mov_b32 v{CACC+i}, v{CACC+16+i}")
    a.label(lk1)
    a("s_waitcnt lgkmcnt(0)")
    a("v_mov_b32 v13, 3")
    a("ds_write_b32 v11, v13")
    a(f"s_lshl_b32 s57, s{S_DD}, 16")
    a(f"s_and_b32 s58, s{S_DD}, 0xffff0000")
    a(f"s_cmp_eq_u32 s{S_CH}, 0")
    a("s_cselect_b32 s55, s57, s58")
    a(f"s_lshl_b32 s54, s{S_HALF}, 11")
    a(f"s_add_u32 s54, s54, s{S_CB0}")
    a(f"s_add_u32 s54, s54, {C_XE}")
    a("v_add_u32 v10, s54, v8")
    for t in range(4):
        k4, k0 = K + 2*t, K + 2*t + 1
        a(f"v_and_b32 v{16+4*t}, 0xffff0000, v{k0}")
        a(f"v_lshlrev_b32 v{17+4*t}, 16, v{k0}")
        a(f"v_and_b32 v{18+4*t}, 0xffff0000, v{k4}")
        a(f"v_lshlrev_b32 v{19+4*t}, 16, v{k4}")
    for i in range(16):
        a(f"v_mul_f32 v{16+i}, s55, v{16+i}")
    lds_flag_wait(a, 12, 14, 3)
    R = 84
    for t in range(4):
        a(f"ds_read_b128 {vr(R+4*t,4)}, v7 offset:{t*1024}")
    a("s_waitcnt lgkmcnt(0)")
    for i in range(16):
        a(f"v_add_f32 v{CACC+i}, v{CACC+i}, v{R+i}")
    for t in range(4):
        y = CACC + 4*t
        a(f"v_cvt_pk_bf16_f32 v{R+2*t}, v{y}, v{y+1}")
        a(f"v_cvt_pk_bf16_f32 v{R+2*t+1}, v{y+2}, v{y+3}")
    for t in range(4):
        y = CACC + 4*t
        a(f"v_lshlrev_b32 v{y}, 16, v{R+2*t}")
        a(f"v_and_b32 v{y+1}, 0xffff0000, v{R+2*t}")
        a(f"v_lshlrev_b32 v{y+2}, 16, v{R+2*t+1}")
        a(f"v_and_b32 v{y+3}, 0xffff0000, v{R+2*t+1}")
    for i in range(16):
        a(f"v_add_f32 v{CACC+i}, v{CACC+i}, v{16+i}")
    for t in range(4):
        y = CACC + 4*t
        a(f"v_cvt_pk_bf16_f32 v{R+2*t}, v{y}, v{y+1}")
        a(f"v_cvt_pk_bf16_f32 v{R+2*t+1}, v{y+2}, v{y+3}")
    for t in range(4):
        a(f"ds_write_b32 v10, v{R+2*t} offset:{t*512}")
        a(f"ds_write_b32 v10, v{R+2*t+1} offset:{t*512+8}")
    a("v_add_u32 v11, s54, v5")
    a("s_lshl_b32 s56, s2, 1")
    a(f"s_add_u32 s56, s56, s{S_CH}")
    a("s_lshl_b32 s56, s56, 12")
    a(f"s_lshl_b32 s57, s{S_HALF}, 11")
    a("s_add_u32 s56, s56, s57")
    a(f"s_add_u32 s56, s56, {WS_YT}")
    a("v_add_u32 v12, s56, v5")
    a("s_waitcnt lgkmcnt(0)")
    a("ds_read_b128 v[24:27], v11")
    a("ds_read_b128 v[28:31], v11 offset:1024")
    a("s_waitcnt lgkmcnt(1)")
    a(f"buffer_store_dwordx4 v[24:27], v12, s[{R_WS}:{R_WS+3}], 0 offen sc1")
    a("s_waitcnt lgkmcnt(0)")
    a(f"buffer_store_dwordx4 v[28:31], v12, s[{R_WS}:{R_WS+3}], 0 offen offset:1024 sc1")
    stamp(a)
    a(f"s_lshr_b32 s47, s{S_Y}, 1")
    a(f"s_and_b32 s48, s{S_Y}, 1")
    a("s_mul_i32 s50, s47, 22")
    a("s_add_u32 s50, s50, s48")
    a("s_lshl_b32 s51, s47, 13")
    a("s_lshl_b32 s52, s48, 12")
    a("s_add_u32 s51, s51, s52")
    a(f"s_add_u32 s51, s51, {F2_HB}")
    a(f"s_mul_i32 s53, s{S_RB2}, 43")
    a("s_add_u32 s53, s53, s50")
    a("s_lshl_b32 s53, s53, 12")
    a(f"s_add_u32 s53, s53, {WS_HF}")
    a("v_lshlrev_b32 v17, 4, v2")
    final_loads(a)
    a("s_barrier")
    def dma2(I):
        slot = I % F2_NSLOT
        for st in range(4):
            a(f"s_add_u32 m0, s51, {slot*F2_SLOT + st*1024}")
            a(f"s_add_u32 s56, s53, {I*8192 + st*1024}")
            a(f"buffer_load_dwordx4 v17, s[{R_WS}:{R_WS+3}], s56 offen lds")
    dma2(4); dma2(5)
    a("s_lshr_b32 s56, s2, 5")
    a("s_lshl_b32 s56, s56, 9")
    a("s_and_b32 s57, s2, 31")
    a("s_lshl_b32 s57, s57, 4")
    a("s_add_u32 s56, s56, s57")
    a(f"s_lshl_b32 s57, s{S_Y}, 2")
    a("s_add_u32 s56, s56, s57")
    a(f"s_add_u32 s55, s56, {WS_FLAG + FL_C2*128}")
    for I in range(1, 8):
        last = min(max(5, I + 4), 10)
        if I == 7:
            a("s_waitcnt vmcnt(0)")
        elif 4 <= I + 1:
            a(f"s_waitcnt vmcnt({4*(last - (I + 1))})")
        a("s_barrier")
        if I == 3:
            publish(a, 8, [55])
        if 6 <= I + 5 <= 10: dma2(I + 5)
    a(f"s_lshl_b32 s56, s{S_CB}, 9")
    a(f"s_add_u32 s56, s56, {WS_FLAG + FL_C2*128}")
    a("v_lshl_add_u32 v6, v2, 3, s56")
    lab = a.newlabel("Lpc"); out = a.newlabel("Lpc")
    a("s_mov_b32 s40, 0")
    a.label(lab)
    a(f"buffer_load_dwordx2 v[8:9], v6, s[{R_WS}:{R_WS+3}], 0 offen sc1")
    a("s_add_u32 s40, s40, 1")
    a("s_waitcnt vmcnt(0)")
    a(f"v_cmp_ne_u32 vcc, s{S_NONCE}, v8")
    a(f"v_cmp_ne_u32 s[56:57], s{S_NONCE}, v9")
    a("s_or_b64 vcc, vcc, s[56:57]")
    a(f"s_cmp_ge_u32 s40, {POLL_MAX}")
    a(f"s_cbranch_scc1 {out}")
    a(f"s_cbranch_vccnz {lab}")
    a.label(out)
    a("v_lshrrev_b32 v5, 3, v2")
    a("v_and_b32 v7, 7, v2")
    for e in range(2):
        a("v_and_b32 v6, 2, v5")
        if e: a("v_or_b32 v6, 4, v6")
        a("v_xor_b32 v6, v6, v7")
        a("v_lshlrev_b32 v6, 4, v6")
        a("v_lshl_add_u32 v6, v5, 12, v6")
        a(f"s_lshl_b32 s56, s{S_CB}, 18")
        a(f"s_lshl_b32 s57, s{S_Y}, 16")
        a("s_add_u32 s56, s56, s57")
        a(f"s_lshl_b32 s57, s{S_RB2}, 7")
        a("s_add_u32 s56, s56, s57")
        a(f"s_add_u32 s56, s56, {WS_YT + e*32768}")
        a(f"s_lshl_b32 s57, s{S_Y}, 11")
        a(f"s_add_u32 m0, s57, {F2_YT + e*1024}")
        a.nop(1)
        a(f"buffer_load_dwordx4 v6, s[{R_WS}:{R_WS+3}], s56 offen sc1 lds")
    a("s_barrier")

def final(a):
    a.label("Lfinal")
    a("s_waitcnt lgkmcnt(0) vmcnt(0)")
    a("s_barrier")
    a(f"s_and_b32 s56, s{S_W}, 3")
    a(f"s_lshr_b32 s59, s{S_W}, 2")
    a(f"s_mul_i32 s57, s56, {16*F2_PP}")
    a("s_lshl_b32 s58, s59, 7")
    a("s_add_u32 s57, s57, s58")
    a(f"v_mul_u32_u24 v6, {F2_PP}, v3")
    a("v_lshl_add_u32 v6, v4, 5, v6")
    a("v_add_u32 v6, s57, v6")
    a("ds_read_b128 v[40:43], v6")
    a("ds_read_b128 v[44:47], v6 offset:16")
    a(f"ds_read_b128 v[48:51], v6 offset:{64*F2_PP}")
    a(f"ds_read_b128 v[52:55], v6 offset:{64*F2_PP+16}")
    a("v_lshrrev_b32 v7, 2, v2")
    a("v_and_b32 v7, 3, v7")
    a("v_and_b32 v16, 2, v7")
    a("v_and_b32 v17, 1, v4")
    a("v_lshl_or_b32 v16, v17, 2, v16")
    a("v_and_b32 v17, 3, v2")
    a("v_lshrrev_b32 v18, 1, v17")
    a("s_lshl_b32 s57, s56, 1")
    a("v_add_u32 v18, s57, v18")
    a("v_xor_b32 v18, v18, v16")
    a("v_lshlrev_b32 v18, 4, v18")
    a("v_and_b32 v17, 1, v17")
    a("v_lshl_add_u32 v18, v17, 3, v18")
    a("v_lshl_add_u32 v7, v4, 3, v7")
    a("v_lshl_add_u32 v18, v7, 7, v18")
    a("s_lshl_b32 s57, s59, 12")
    a(f"s_add_u32 s57, s57, {F2_YT}")
    a("v_add_u32 v18, s57, v18")
    a("ds_read_b64_tr_b16 v[56:57], v18")
    a("ds_read_b64_tr_b16 v[58:59], v18 offset:512")
    a(f"s_load_dwordx2 s[40:41], s[0:1], {KA_OUT}")
    a("s_mov_b32 s56, 0xbfb8aa3b")
    a("s_waitcnt lgkmcnt(0)")
    ptr_srd(a, R_OUT, 40, S*D*2)
    for j in range(8): a(f"v_add_f32 v{40+j}, v{40+j}, v{48+j}")
    for j in range(8): a(f"v_mul_f32 v{48+j}, s56, v{40+j}")
    for j in range(8): a(f"v_exp_f32 v{48+j}, v{48+j}")
    for m in range(4):
        a(f"v_lshlrev_b32 v{60+2*m}, 16, v{VFQ+m}")
        a(f"v_and_b32 v{61+2*m}, 0xffff0000, v{VFQ+m}")
        a(f"v_lshlrev_b32 v{68+2*m}, 16, v{56+m}")
        a(f"v_and_b32 v{69+2*m}, 0xffff0000, v{56+m}")
    for j in range(8): a(f"v_add_f32 v{48+j}, 1.0, v{48+j}")
    for j in range(8): a(f"v_rcp_f32 v{48+j}, v{48+j}")
    for j in range(8): a(f"v_sub_f32 v{76+j}, v{60+j}, v{VFS}")
    for j in range(8): a(f"v_mul_f32 v{76+j}, v{76+j}, v{VFS+1}")
    for j in range(8): a(f"v_mul_f32 v{40+j}, v{40+j}, v{48+j}")
    for j in range(8): a(f"v_mul_f32 v{76+j}, v{76+j}, v{68+j}")
    for j in range(8): a(f"v_fmac_f32 v{60+j}, v{76+j}, v{40+j}")
    for m in range(4):
        a(f"v_cvt_pk_bf16_f32 v{8+m}, v{60+2*m}, v{61+2*m}")
    a(f"buffer_store_dwordx4 v[8:11], v{VFO}, s[{R_OUT}:{R_OUT+3}], 0 offen")
    asmlib.Stamps.n = 15
    stamp(a)
    if asmlib.PROF:
        a("s_waitcnt lgkmcnt(0)")
        a("s_lshl_b32 s60, s2, 3")
        a(f"s_add_u32 s60, s60, s{S_W}")
        a("s_lshl_b32 s60, s60, 7")
        a(f"s_add_u32 s60, s60, {WS_PROF}")
        a("v_mov_b32 v20, s60")
        for i in range(16):
            a(f"v_mov_b32 v21, s{STAMP_BASE+2*i}")
            a(f"buffer_store_dword v21, v20, s[{R_WS}:{R_WS+3}], 0 offen offset:{4*i}")
            a.nop(2)
    a.label("Ldone")
    a("s_endpgm")

def gen():
    a = A()
    stamp_reset()
    prologue(a)
    path_X(a)
    path_Y(a)
    final(a)
    return a

def build(prof=False):
    asmlib.PROF = prof
    a = gen()
    hdr = open("recurrent_scan__ssm_conv_h3__glu_gated_geglu__prompt.s.ref").read().split("; Override")[0]
    s = hdr + f"; @launch grid=(256,1,1) block=(512,1,1) lds={LDS_TOTAL}\n"
    s += '.amdgcn_target "amdgcn-amd-amdhsa--gfx950"\n.text\n'
    s += kernel_header(NAME) + a.text()
    s += '.section .rodata,"a"\n.p2align 6\n' + kernel_desc(NAME, 256, 100)
    return s

if __name__ == "__main__":
    prof = len(sys.argv) > 2 and sys.argv[2] == "prof"
    open(sys.argv[1], "w").write(build(prof))
```
